```python
import torch

def _softmax(x, axis=-1):
    return torch.softmax(x, dim=axis)
def _gelu(x):
    return torch.nn.functional.gelu(x, approximate="tanh")
def _silu(x):
    return torch.nn.functional.silu(x)
def _sigmoid(x):
    return torch.sigmoid(x)
def _layernorm(x, axis=-1, eps=1e-5):
    m = x.mean(dim=axis, keepdim=True)
    v = x.var(dim=axis, keepdim=True, unbiased=False)
    return (x - m) / torch.sqrt(v + eps)
def _scatter_add(tgt, idx, src, axis=0):
    return tgt.clone().index_add_(axis, idx, src)
def _segment_sum(src, seg, n):
    out = torch.zeros((n,) + src.shape[1:], dtype=src.dtype)
    return out.index_add_(0, seg, src)
def _pad(x, pw):
    flat = tuple(v for pair in reversed(pw) for v in pair)
    return torch.nn.functional.pad(x, flat)

kernel_name = 'sequential_preLN__compressed_kv_cla__dense_activation_silu__decode'

def setup_inputs():

    _w = (lambda a: (lambda t: t.to(torch.bfloat16) if t.is_floating_point() else t)(torch.as_tensor(a)))
    def _A_setup():
        B, H, Sq, Sk, D, M = 2, 32, 1, 4096, 128, 640
        Dc = 4 * D
        return {
            "x": _w((lambda *s: torch.randn(*s, dtype=torch.bfloat16) * 0.05)(B, Sq, M)),
            "c_kv": _w((lambda *s: torch.randn(*s, dtype=torch.bfloat16) * 0.8)(B, Sk, Dc)),
            "w_q": _w((lambda *s: torch.randn(*s, dtype=torch.bfloat16) * 3.2)(M, H, D) * (M ** -0.5)),
            "w_uk": _w((lambda *s: torch.randn(*s, dtype=torch.bfloat16) * 3.2)(Dc, H, D) * (Dc ** -0.5)),
            "w_uv": _w((lambda *s: torch.randn(*s, dtype=torch.bfloat16) * 0.8)(Dc, H, D) * (Dc ** -0.5)),
            "w_o": _w((lambda *s: torch.randn(*s, dtype=torch.bfloat16) * 0.8)(H, D, M) * ((H * D) ** -0.5)),
        }
    _A_in = _A_setup()

    def _B_setup():
        B, S, D, F = 2, 1, 640, 1728
        return {
            "x": _w((lambda *s: torch.randn(*s, dtype=torch.bfloat16) * 0.05)(B, S, D)),
            "w1": _w((lambda *s: torch.randn(*s, dtype=torch.bfloat16) * 3.2)(D, F) * (D ** -0.5)),
            "w2": _w((lambda *s: torch.randn(*s, dtype=torch.bfloat16) * 0.4)(F, D) * (F ** -0.5)),
        }
    _B_in = _B_setup()

    return {
        "A_x": _A_in["x"],
        "A_c_kv": _A_in["c_kv"],
        "A_w_q": _A_in["w_q"],
        "A_w_uk": _A_in["w_uk"],
        "A_w_uv": _A_in["w_uv"],
        "A_w_o": _A_in["w_o"],
        "B_x": _B_in["x"],
        "B_w1": _B_in["w1"],
        "B_w2": _B_in["w2"],
    }

def reference(A_x, A_c_kv, A_w_q, A_w_uk, A_w_uv, A_w_o, B_x, B_w1, B_w2):
    def _A_ref(x, c_kv, w_q, w_uk, w_uv, w_o):
        B, Sq, M = x.shape[0], x.shape[1], x.shape[2]
        Sk = c_kv.shape[1]
        H, D = w_q.shape[1], w_q.shape[2]
        q = torch.einsum("bqm,mhd->bhqd", x, w_q)
        k = torch.einsum("bkc,chd->bhkd", c_kv, w_uk)
        v = torch.einsum("bkc,chd->bhkd", c_kv, w_uv)
        scores = torch.einsum("bhqd,bhkd->bhqk", q, k) * (D ** -0.5)
        off = Sk - Sq
        qi = torch.arange(Sq)[:, None]
        kj = torch.arange(Sk)[None, :]
        cmask = kj <= (qi + off)
        scores = torch.where(cmask[None, None], scores, -1e9)
        p = _softmax(scores, axis=-1)
        ctx = torch.einsum("bhqk,bhkd->bhqd", p, v)
        return torch.einsum("bhqd,hdm->bqm", ctx, w_o)

    def _B_ref(x, w1, w2):
        h = torch.einsum("bsd,df->bsf", x, w1)
        h = _silu(h)
        out = torch.einsum("bsf,fd->bsd", h, w2)
        return out

    x = A_x
    h = x + _A_ref(_layernorm(x, axis=-1), A_c_kv, A_w_q, A_w_uk, A_w_uv, A_w_o)
    h2 = h + _B_ref(_layernorm(h, axis=-1), B_w1, B_w2)
    return h2
```

```python
import re
REG = re.compile(r'^(-|abs\()?([vas])(?:(\d+)|\[(\d+):(\d+)\])\)?$')
def regs(op):
    op = op.strip()
    if op in ('vcc', 'vcc_lo', 'vcc_hi'): return {('s', 'vcc')}
    if op in ('exec', 'exec_lo', 'exec_hi'): return {('s', 'exec')}
    if op == 'm0': return {('s', 'm0')}
    m = REG.match(op)
    if not m: return set()
    k = m.group(2)
    if m.group(3) is not None: return {(k, int(m.group(3)))}
    return {(k, i) for i in range(int(m.group(4)), int(m.group(5)) + 1)}
TRANS = ('v_exp_f32', 'v_log_f32', 'v_rcp_f32', 'v_rsq_f32', 'v_sqrt_f32', 'v_sin_f32', 'v_cos_f32')
class Ins:
    def __init__(self, text):
        self.text = text
        t = text.split(';')[0].strip()
        self.label = t.endswith(':')
        self.directive = t.startswith('.')
        self.empty = (t == '')
        self.op = ''; self.w = set(); self.r = set(); self.kind = 'none'
        self.dpp = False; self.srcC = set(); self.srcAB = set(); self.stdata = set()
        if self.label or self.directive or self.empty: return
        parts = t.split(None, 1)
        self.op = op = parts[0]
        rest = parts[1] if len(parts) > 1 else ''
        ops = [o.strip() for o in rest.split(',')] if rest else []
        mods = ''
        if ops:
            lp = ops[-1].split(None, 1)
            ops[-1] = lp[0]; mods = lp[1] if len(lp) > 1 else ''
        clean = []
        for o in ops:
            sp = o.split(None, 1)
            clean.append(sp[0])
            if len(sp) > 1: break
        ops = clean
        self.mods = rest
        R = [regs(o) for o in ops]
        U = lambda l: set().union(*l) if l else set()
        if op.startswith('v_mfma'):
            self.kind = 'mfma'; self.w = R[0]; self.srcAB = R[1] | R[2]; self.srcC = R[3]; self.r = self.srcAB | self.srcC
            self.passes = 8 if '32x32' in op else 4
        elif op.startswith('v_'):
            self.kind = 'valu'
            self.dpp = '_dpp' in op or 'quad_perm' in rest or 'row_' in rest
            if op.startswith('v_permlane') or op.startswith('v_swap'):
                self.w = R[0] | R[1]; self.r = R[0] | R[1]
            elif op.startswith('v_cmp'):
                self.w = R[0]; self.r = U(R[1:])
            elif '_co_' in op:
                self.w = R[0] | R[1]; self.r = U(R[2:])
            else:
                self.w = R[0]; self.r = U(R[1:])
                if op.startswith(('v_fmac', 'v_dot2c', 'v_writelane', 'v_pk_fmac')) or self.dpp or 'sdwa' in op: self.r |= R[0]
        elif op.startswith(('buffer_', 'global_')):
            self.kind = 'vmem'
            lds = bool(re.search(r'\blds\b', rest)) or 'load_lds' in op
            self.lds = lds
            if 'load' in op and not lds: self.w = R[0]; self.r = U(R[1:])
            else:
                self.r = U(R)
                if 'store' in op and ('x4' in op or 'x3' in op): self.stdata = R[0] if op.startswith('buffer') else R[1]
            if lds: self.r |= {('s', 'm0')}
        elif op.startswith('ds_'):
            self.kind = 'ds'
            if 'read' in op or 'permute' in op or 'swizzle' in op: self.w = R[0]; self.r = U(R[1:])
            else: self.r = U(R)
        elif op.startswith('s_'):
            self.kind = 'salu'
            if op.startswith(('s_cmp', 's_bitcmp', 's_cbranch', 's_branch', 's_waitcnt', 's_nop', 's_barrier', 's_endpgm', 's_sleep', 's_setprio')):
                self.r = U(R)
            else:
                self.w = R[0] if R else set(); self.r = U(R[1:])
                if 'saveexec' in op: self.w |= {('s', 'exec')}
    def states(self):
        if self.op == 's_nop': return int(self.text.split(';')[0].split()[1], 0) + 1
        return 1
def need(p, c):
    n = 0
    vw = {x for x in p.w if x[0] in 'va'}; sw = {x for x in p.w if x[0] == 's'}
    if p.kind == 'valu':
        if c.kind == 'mfma' and vw & c.r: n = max(n, 3 if p.op.startswith('v_dot') else 2)
        if c.kind == 'valu':
            if c.dpp and vw & c.r: n = max(n, 2)
            if c.op.startswith('v_permlane') and vw & c.r: n = max(n, 2)
            if c.op.startswith(('v_readlane', 'v_readfirstlane')) and vw & c.r: n = max(n, 1)
            if sw & c.r: n = max(n, 4 if c.op.startswith(('v_readlane', 'v_writelane')) else 2)
            if c.op.startswith('v_cndmask') and ('s', 'vcc') in sw: n = max(n, 2)
            if p.op.startswith(TRANS) and vw & c.r: n = max(n, 1)
            if ('sdwa' in p.op or 'op_sel' in p.mods) and vw & (c.r | c.w): n = max(n, 1)
            if p.op.startswith('v_dot') and vw & (c.r | c.w):
                same = p.op == c.op
                ops = c.text.split(';')[0].split(None, 1)[1].split(',')
                ab = regs(ops[1]) | regs(ops[2].split()[0]) if len(ops) > 2 else set()
                n = max(n, 0 if (same and not (vw & ab)) else 3)
        if c.kind in ('vmem', 'ds') and p.op.startswith('v_dot') and vw & c.r: n = max(n, 3)
        if c.kind == 'vmem' and sw & c.r: n = max(n, 5)
        if c.kind == 'salu' and sw & c.r: n = max(n, 0)
    if p.kind == 'mfma':
        P = p.passes
        if c.kind == 'mfma':
            if p.w & c.srcAB: n = max(n, {4: 8, 8: 12}[P])
            if p.w & c.srcC and not (p.w == c.srcC and c.passes == P): n = max(n, {4: 6, 8: 10}[P])
            if p.w & c.w and not (p.w == c.srcC): n = max(n, {4: 6, 8: 10}[P])
        elif c.kind in ('valu', 'vmem', 'ds'):
            if p.w & (c.r | c.w): n = max(n, {4: 8, 8: 12}[P])
            if c.kind == 'valu' and p.srcC & c.w: n = max(n, {4: 3, 8: 7}[P])
    if p.kind == 'salu' and ('s', 'm0') in p.w and c.kind == 'vmem' and getattr(c, 'lds', False): n = max(n, 1)
    if p.stdata and p.stdata & c.w: n = max(n, 2 if c.kind in ('valu', 'mfma') else 1)
    return n
class Asm:
    def __init__(self): self.l = []
    def __call__(self, s):
        for x in s.split('\n'):
            if x.strip(): self.l.append(x.strip())
    def finish(self):
        out = []; hist = []
        nn = 0
        for t in self.l:
            i = Ins(t)
            if i.label or i.directive or i.empty:
                out.append(t if i.label or i.directive else '    ' + t); continue
            req = 0; dist = 0
            for p in reversed(hist):
                k = need(p, i)
                if k > dist: req = max(req, k - dist)
                dist += p.states()
                if dist > 20: break
            while req > 0:
                k = min(req, 16); nop = Ins(f's_nop {k-1}'); out.append(f'    s_nop {k-1}'); hist.append(nop); req -= k; nn += 1
            out.append('    ' + t); hist.append(i)
            if i.op in ('s_branch', 's_endpgm'): hist = []
            hist = hist[-24:]
        return '\n'.join(out) + '\n'
```

```python
import sys, math, struct
sys.path.insert(0, 'work')
from asmlib import Asm
NAME = "sequential_preLN__compressed_kv_cla__dense_activation_silu__decode"
def f2u(x): return struct.unpack('<I', struct.pack('<f', x))[0]

H1, H2, H3S, H4, H5, H6, H3 = 0x10000, 0x30000, 0x40000, 0x50000, 0x60000, 0x68000, 0x100000
WS_SIZE = 0x300000
DIAG = 0x300000
LDS_BYTES = 163840
POLL_MAX = 40000

def gen(diag=False, opt=None):
    opt = opt or {}
    a = Asm()
    NT = opt.get('nt', 'nt')
    wssz = WS_SIZE + (0x40000 if diag else 0)
    sWS, sA, sB, sC = 's[28:31]', 's[32:35]', 's[36:39]', 's[40:43]'
    T, W, X, J, MSK, CNT = 's44', 's45', 's46', 's47', 's48', 's50'
    nst = [0]
    def stamp(k):
        if diag: a(f"s_memrealtime s[{64+2*k}:{65+2*k}]\ns_waitcnt lgkmcnt(0)")
    def srd(s, ptr, size):
        b = int(s[2:4]); a(f"s_mov_b32 s{b}, s{ptr}\ns_mov_b32 s{b+1}, s{ptr+1}\ns_mov_b32 s{b+2}, {size}")
    def vr(b, n=4): return f"v[{b}:{b+n-1}]"
    def ar(b, n=4): return f"a[{b}:{b+n-1}]"
    def mfma(d, A, B, c): a(f"v_mfma_f32_16x16x32_bf16 {d}, {A}, {B}, {c}")
    def check(loads, vT, tmp, retry):
        for j in range(4):
            if len(loads) == 1: a(f"v_xor_b32 v{tmp+j}, v{loads[0]+j}, v{vT+j}")
            else: a(f"v_bitop3_b32 v{tmp+j}, v{loads[0]+j}, v{loads[1]+j}, v{vT+j} bitop3:0x7e")
        for L in loads[2:]:
            for j in range(4): a(f"v_bitop3_b32 v{tmp+j}, v{tmp+j}, v{L+j}, v{vT+j} bitop3:0xf6")
        a(f"v_or3_b32 v{tmp}, v{tmp}, v{tmp+1}, v{tmp+2}")
        a(f"v_bitop3_b32 v{tmp}, v{tmp}, v{tmp+3}, {MSK} bitop3:0xa8")
        a(f"v_cmp_ne_u32 vcc, 0, v{tmp}")
        a(f"s_cbranch_vccnz {retry}")
    def poll_head(lbl):
        a(f"s_mov_b32 {CNT}, 0\n{lbl}:\ns_add_u32 {CNT}, {CNT}, 1\ns_cmp_gt_u32 {CNT}, {POLL_MAX}\ns_cbranch_scc1 L_fail")
    def red32(op, v, t):
        for m in ("quad_perm:[1,0,3,2]", "quad_perm:[2,3,0,1]", "row_half_mirror", "row_mirror"):
            a(f"{op}_dpp v{v}, v{v}, v{v} {m} row_mask:0xf bank_mask:0xf")
        a(f"v_mov_b32 v{t}, v{v}\nv_permlane16_swap_b32 v{v}, v{t}\n{op} v{v}, v{v}, v{t}")
    def tags4(vT, vchunk, tmp):
        a(f"v_lshlrev_b32 v{tmp}, 2, v{vchunk}\nv_lshrrev_b32 v{vT}, v{tmp}, {T}".replace(f"v_lshrrev_b32 v{vT}, v{tmp}, {T}", f"v_lshrrev_b32_e64 v{vT}, v{tmp}, {T}"))
        for j in range(1, 4): a(f"v_lshrrev_b32 v{vT+j}, {j}, v{vT}")
    def idsel(vS, tmp):
        a(f"""v_bfe_u32 v{tmp}, v1, 2, 1
        v_lshlrev_b32 v{tmp}, 4, v{tmp}
        v_mov_b32 v{tmp+1}, 0x3f80
        v_lshlrev_b32 v{tmp}, v{tmp}, v{tmp+1}
        v_and_b32 v{tmp+1}, 11, v1""")
        for i in range(2):
            for j in range(4):
                a(f"v_cmp_eq_u32 vcc, {8*i+j}, v{tmp+1}\nv_cndmask_b32 v{vS+4*i+j}, 0, v{tmp}, vcc")

    if diag: a("s_memrealtime s[64:65]")
    a(f"""s_cmp_ge_u32 s2, 256
    s_cbranch_scc1 L_end
    s_load_dwordx16 s[4:19], s[0:1], 0
    s_load_dwordx8 s[20:27], s[0:1], 64
    v_lshrrev_b32 v1, 6, v0
    v_and_b32 v0, 63, v0
    v_readfirstlane_b32 {W}, v1
    v_and_b32 v1, 15, v0
    v_lshrrev_b32 v2, 4, v0
    v_lshlrev_b32 v3, 4, v0
    s_and_b32 {X}, s2, 7
    s_lshr_b32 {J}, s2, 4
    s_mov_b32 {MSK}, 0x00010001
    s_mov_b32 s31, 0x20000
    s_mov_b32 s35, 0x20000
    s_mov_b32 s39, 0x20000
    s_mov_b32 s43, 0x20000
    s_lshr_b32 s51, {J}, 2
    s_lshl_b32 s52, {X}, 2
    s_add_u32 s51, s51, s52          ; s51 = h = 4x + (j>>2)
    s_and_b32 s53, {J}, 3
    s_add_u32 s52, s52, {W}          ; s52 = 4x + w
    s_bitcmp1_b32 s2, 3
    s_cbranch_scc1 L_Y""")
    WQ, WUK, XL = 8192, 49152, 0
    a(f"""v_lshlrev_b32 v4, 2, v2
    v_xor_b32 v4, v4, v1
    v_lshlrev_b32 v4, 4, v4
    v_lshl_add_u32 v4, v2, 13, v4
    v_lshrrev_b32 v5, 1, v2
    v_xor_b32 v5, v5, v1
    v_lshlrev_b32 v5, 4, v5
    v_lshl_add_u32 v5, v2, 13, v5
    s_mul_i32 s54, s53, {160*8192}
    s_mul_i32 s55, {W}, {40*8192}
    s_add_u32 s54, s54, s55
    s_lshl_b32 s55, s51, 8
    s_add_u32 s54, s54, s55
    s_lshl_b32 s55, {J}, 18
    s_lshl_b32 s56, s52, 8
    s_add_u32 s55, s55, s56
    s_lshl_b32 s56, {W}, 10          ; x soffset
    s_add_u32 m0, s56, {XL}
    s_mul_i32 s57, {W}, 10240
    s_add_u32 s57, s57, {WQ}
    s_lshl_b32 s58, {W}, 13
    s_add_u32 s58, s58, {WUK}
    s_waitcnt lgkmcnt(0)
    s_load_dword {T}, s[26:27], 0""")
    srd(sC, 4, 2560); srd(sA, 8, 640*8192)
    a(f"buffer_load_dwordx4 v3, {sC}, s56 offen lds")
    a("s_mov_b32 m0, s57")
    srd(sB, 10, 512*8192)
    for i in range(10):
        a(f"buffer_load_dwordx4 v4, {sA}, s54 offen {NT} lds")
        if i < 9: a(f"s_add_u32 m0, m0, 1024\ns_add_u32 s54, s54, {4*8192}")
    def wuk(i):
        if i: a(f"v_xor_b32 v6, {32*i}, v5")
        a(f"s_add_u32 m0, s58, {1024*i}")
        a(f"buffer_load_dwordx4 {'v6' if i else 'v5'}, {sB}, s55 offen {NT} lds")
        a(f"s_add_u32 s55, s55, {4*8192}")
    wuk(0); wuk(1)
    srd(sWS, 26, wssz)
    a(f"""v_lshrrev_b32 v7, 5, v0
    v_mul_u32_u24 v7, 1280, v7
    v_and_b32 v8, 31, v0
    v_mad_u32_u24 v7, v8, 40, v7
    v_bfe_u32 v8, v1, 1, 1
    v_mul_u32_u24 v8, 1280, v8
    v_lshl_add_u32 v8, v2, 4, v8
    s_mul_i32 s56, s53, 320
    v_add_u32 v8, s56, v8
    s_waitcnt vmcnt(12) lgkmcnt(0)
    s_barrier
    s_not_b32 {T}, {T}""")
    for i in range(5): a(f"ds_read_b64 {vr(10+2*i,2)}, v7 offset:{XL+8*i}")
    for s in range(5): a(f"ds_read_b128 {vr(20+4*s)}, v8 offset:{XL+64*s}")
    a(f"""s_mov_b32 s56, 0x3f803f80
    s_mov_b32 s57, 0xffff0000
    v_mov_b32 v40, 0
    s_waitcnt lgkmcnt(5)""")
    for i in range(10): a(f"v_dot2_f32_bf16 v40, v{10+i}, s56, v40")
    red32("v_add_f32", 40, 41)
    a(f"v_mul_f32 v40, {hex(f2u(1/640))}, v40\nv_mov_b32 v42, 0\nv_mov_b32 v43, 0")
    for i in range(10):
        a(f"""v_lshlrev_b32 v44, 16, v{10+i}
        v_and_b32 v45, s57, v{10+i}
        v_sub_f32 v44, v44, v40
        v_sub_f32 v45, v45, v40
        v_fmac_f32 v42, v44, v44
        v_fmac_f32 v43, v45, v45""")
    a("v_add_f32 v42, v42, v43")
    red32("v_add_f32", 42, 41)
    a(f"""v_mov_b32 v43, {hex(f2u(1e-5))}
    v_fmac_f32 v43, {hex(f2u(1/640))}, v42
    v_rsq_f32 v42, v43
    v_mul_f32 v40, v40, v42          ; mean*rstd
    v_mov_b32 v43, v42
    v_mov_b32 v41, v40
    v_permlane32_swap_b32 v42, v43   ; v42 = rstd b0 everywhere, v43 = rstd b1
    v_permlane32_swap_b32 v40, v41
    s_mov_b32 vcc_lo, 0xcccccccc
    s_mov_b32 vcc_hi, 0xcccccccc
    v_cndmask_b32 v42, v42, v43, vcc
    v_cndmask_b32 v40, v40, v41, vcc
    s_waitcnt lgkmcnt(0)""")
    for i in range(20):
        a(f"""v_lshlrev_b32 v44, 16, v{20+i}
        v_and_b32 v45, s57, v{20+i}
        v_fma_f32 v44, v44, v42, -v40
        v_fma_f32 v45, v45, v42, -v40
        v_cvt_pk_bf16_f32 v{20+i}, v44, v45""")
    for i in range(2, 8): wuk(i)
    vT, vTn = 48, 52
    a("v_and_b32 v9, 3, v0")
    tags4(vT, 9, 44)
    a(f"""v_lshrrev_b32_e64 v{vTn}, v1, {T}
    v_bfe_u32 v10, v0, 2, 2          ; rr
    v_xor_b32 v11, {W}, v10
    v_lshlrev_b32 v11, 6, v11
    v_lshl_add_u32 v11, v10, 8, v11
    v_lshl_add_u32 v11, v9, 4, v11
    v_lshl_add_u32 v11, v2, 11, v11
    v_lshlrev_b32 v12, 8, v2
    v_lshl_add_u32 v12, v1, 4, v12
    s_lshl_b32 s54, s51, 12
    s_lshl_b32 s55, {W}, 10
    s_add_u32 s54, s54, s55
    s_lshl_b32 s55, s53, 6
    s_add_u32 s54, s54, s55
    s_add_u32 s54, s54, {H1}
    s_lshl_b32 s55, s52, 12
    s_add_u32 s55, s55, {H1}
    v_xor_b32 v13, v1, v2
    v_lshlrev_b32 v13, 4, v13
    v_lshl_add_u32 v13, v1, 9, v13
    v_add_u32 v13, s58, v13
    v_xor_b32 v14, 64, v13
    v_xor_b32 v15, 128, v13
    v_xor_b32 v16, 192, v13
    v_lshrrev_b32 v17, 5, v0
    v_lshlrev_b32 v17, 15, v17
    v_lshl_add_u32 v17, v1, 2, v17
    s_lshl_b32 s59, {J}, 11
    s_lshl_b32 s60, s52, 6
    s_add_u32 s59, s59, s60
    s_add_u32 s59, s59, {H2}
    v_not_b32 v18, v{vTn}
    v_and_b32 v19, 0x10000, v18
    v_and_b32 v18, 1, v18
    v_lshlrev_b32 v18, 16, v18""")
    stamp(1)
    a("s_waitcnt vmcnt(8)\ns_barrier")
    stamp(2)
    for s in range(5):
        for t in range(2):
            for rd in range(2):
                a(f"ds_read_b64_tr_b16 {ar((t*5+s)*4+2*rd,2)}, v11 offset:{WQ+(8*s+rd)*1024+8*t}")
    for s in range(5):
        a(f"s_waitcnt lgkmcnt({min(15,16-4*s)})")
        for t in range(2):
            mfma(vr(56+4*t), ar((t*5+s)*4), vr(20+4*s), vr(56+4*t) if s else '0')
    for j in range(4): a(f"v_cvt_pk_bf16_f32 v{64+j}, v{56+2*j}, v{57+2*j}")
    for j in range(4): a(f"v_bfi_b32 v{64+j}, {MSK}, v{vT+j}, v{64+j}")
    for j in range(4):
        a(f"""v_lshlrev_b32 v44, 16, v{64+j}
        v_and_b32 v45, s57, v{64+j}
        v_sub_f32 v44, v{56+2*j}, v44
        v_sub_f32 v45, v{57+2*j}, v45
        v_cvt_pk_bf16_f32 v{68+j}, v44, v45""")
    a("s_mov_b32 vcc_lo, 0xaaaaaaaa\ns_mov_b32 vcc_hi, 0xaaaaaaaa")
    for j in range(4): a(f"v_bfi_b32 v{68+j}, {MSK}, v{vT+j}, v{68+j}")
    for j in range(4): a(f"v_cndmask_b32 v{64+j}, v{64+j}, v{68+j}, vcc")
    a(f"""s_mov_b32 exec_lo, 0x000f000f
    s_mov_b32 exec_hi, 0x000f000f
    buffer_store_dwordx4 {vr(64)}, v12, {sWS}, s54 offen sc1
    s_mov_b64 exec, -1""")
    stamp(3)
    a("s_waitcnt vmcnt(1)")
    for t in range(2):
        for s in range(4): a(f"ds_read_b128 {ar(40+16*t+4*s)}, v{13+s} offset:{256*t}")
    poll_head("L_pollB")
    for s in range(4): a(f"buffer_load_dwordx4 {vr(72+4*s)}, v3, {sWS}, s55 offen offset:{1024*s} sc1")
    a("s_waitcnt vmcnt(0)")
    check([72, 76, 80, 84], vT, 44, "L_pollB")
    a("s_waitcnt lgkmcnt(0)")
    stamp(4)
    for s in range(4):
        for t in range(2): mfma(vr(56+4*t), vr(72+4*s), ar(40+16*t+4*s), vr(56+4*t) if s else '0')
    a(f"s_mov_b32 s56, {hex(f2u(128**-0.5*math.log2(math.e)))}\ns_mov_b32 s60, 0x07060302")
    a("""v_add_f32 v56, v56, v57
    v_add_f32 v58, v58, v59
    v_add_f32 v60, v60, v61
    v_add_f32 v62, v62, v63
    v_permlane32_swap_b32 v56, v58
    v_permlane32_swap_b32 v60, v62
    v_add_f32 v56, v56, v58
    v_add_f32 v60, v60, v62
    v_mov_b32 v57, v56
    v_mov_b32 v61, v60
    v_permlane16_swap_b32 v56, v57
    v_permlane16_swap_b32 v60, v61
    v_add_f32 v56, v56, v57
    v_add_f32 v60, v60, v61
    v_mul_f32 v56, s56, v56
    v_mul_f32 v60, s56, v60
    v_add_u32 v56, v56, v18
    v_add_u32 v60, v60, v19
    v_perm_b32 v56, v60, v56, s60""")
    a(f"""v_bfi_b32 v56, {MSK}, v{vTn}, v56
    s_mov_b32 exec_lo, 0x0000ffff
    s_mov_b32 exec_hi, 0x0000ffff
    buffer_store_dword v56, v17, {sWS}, s59 offen sc1
    s_mov_b64 exec, -1""")
    stamp(5)
    vS = 56
    a(f"""s_cmp_lt_u32 {J}, 10
    s_cbranch_scc1 L_E
    s_sub_u32 s61, {J}, 10
    s_lshl_b32 s61, s61, 3
    s_add_u32 s61, s61, {X}          ; idx
    s_cmp_lt_u32 s61, 27
    s_cbranch_scc1 L_FG
    s_sub_u32 s61, s61, 27           ; rho
    s_cmp_ge_u32 s61, 20
    s_cbranch_scc1 L_done
    s_cmp_lg_u32 {W}, 0
    s_cbranch_scc1 L_done""")
    idsel(vS, 44)
    srd(sA, 22, 2560)
    a(f"""v_lshrrev_b32 v4, 3, v0
    v_lshlrev_b32 v4, 8, v4
    v_and_b32 v5, 7, v0
    v_lshl_add_u32 v4, v5, 4, v4
    s_lshr_b32 s54, s61, 1
    s_lshl_b32 s54, s54, 11
    s_and_b32 s55, s61, 1
    s_lshl_b32 s55, s55, 7
    s_add_u32 s54, s54, s55
    s_add_u32 s54, s54, {H5}
    s_lshl_b32 s55, s61, 12
    s_add_u32 s55, s55, {H6}
    v_mul_u32_u24 v6, 1280, v2
    v_lshl_add_u32 v6, v1, 3, v6
    s_lshl_b32 s56, s61, 6""")
    for j in range(4): a(f"v_and_b32 v{84+j}, {MSK}, v{vT+j}")
    poll_head("L_pollR1")
    a(f"buffer_load_dwordx4 {vr(68)}, v4, {sWS}, s54 offen sc1\ns_waitcnt vmcnt(0)")
    check([68], vT, 44, "L_pollR1")
    mfma(vr(64), vr(vS), vr(68), '0')
    stamp(6)
    poll_head("L_pollR2")
    for i in range(3): a(f"buffer_load_dwordx4 {vr(72+4*i)}, v3, {sWS}, s55 offen offset:{1024*i} sc1")
    a(f"""s_mov_b32 exec_lo, 0x00ffffff
    s_mov_b32 exec_hi, 0
    buffer_load_dwordx4 {vr(84)}, v3, {sWS}, s55 offen offset:3072 sc1
    s_mov_b64 exec, -1
    s_waitcnt vmcnt(0)""")
    check([72, 76, 80, 84], vT, 44, "L_pollR2")
    stamp(7)
    for i in range(4): mfma(vr(64), vr(vS), vr(72+4*i), vr(64))
    for r in range(4): a(f"v_add_f32_dpp v{64+r}, v{64+r}, v{64+r} row_ror:8 row_mask:0xf bank_mask:0xf")
    a(f"""v_cvt_pk_bf16_f32 v64, v64, v65
    v_cvt_pk_bf16_f32 v65, v66, v67
    s_mov_b32 exec_lo, 0x00ff00ff
    s_mov_b32 exec_hi, 0
    buffer_store_dwordx2 v[64:65], v6, {sA}, s56 offen
    s_cmp_lg_u32 s61, 0
    s_cbranch_scc1 L_done
    s_mov_b64 exec, 1
    v_mov_b32 v4, {T}
    buffer_store_dword v4, v3, {sWS}, 0 offen sc1
    s_branch L_done""")
    CX, CXB, WOL = 4096, 1152, 81920
    a("L_E:")
    srd(sA, 14, 4096*1280)
    a(f"""v_lshrrev_b32 v4, 3, v0
    v_and_b32 v5, 2, v4
    v_and_b32 v6, 7, v0
    v_xor_b32 v5, v5, v6
    v_lshlrev_b32 v5, 4, v5
    s_movk_i32 s54, 1280
    v_mad_u32_u24 v4, v4, s54, v5
    s_mul_i32 s54, s52, {128*1280}
    s_lshl_b32 s55, {J}, 7
    s_add_u32 s54, s54, s55
    s_mul_i32 s55, {W}, {16*1088}
    s_add_u32 m0, s55, {WOL}""")
    for i in range(16):
        a(f"buffer_load_dwordx4 v4, {sA}, s54 offen {NT} lds")
        if i < 15: a(f"s_add_u32 m0, m0, 1088\ns_add_u32 s54, s54, {8*1280}")
    idsel(vS, 44)
    a(f"""v_lshrrev_b32 v5, 1, v10
    v_xor_b32 v5, {W}, v5
    v_lshlrev_b32 v5, 5, v5
    v_lshl_add_u32 v5, v10, 7, v5
    v_lshl_add_u32 v5, v9, 3, v5
    s_movk_i32 s54, 1088
    v_mad_u32_u24 v5, v2, s54, v5
    v_add_u32 v5, {WOL}, v5
    v_add_u32 v6, 512, v5            ; rd=1
    v_lshlrev_b32 v7, 9, v2
    v_lshl_add_u32 v7, v1, 4, v7
    s_lshl_b32 s54, s52, 11
    s_add_u32 s54, s54, {H4}
    v_and_b32 v8, 1, v2
    v_mul_u32_u24 v8, {CXB}, v8
    v_lshrrev_b32 v11, 1, v2
    v_lshl_add_u32 v8, v11, 7, v8
    v_lshl_add_u32 v8, v1, 3, v8
    s_lshl_b32 s55, {W}, 8
    v_add_u32 v8, s55, v8
    v_and_b32 v11, 1, v1
    v_mul_u32_u24 v11, {CXB}, v11
    v_bfe_u32 v12, v1, 1, 1
    v_lshl_add_u32 v11, v12, 6, v11
    v_lshl_add_u32 v11, v2, 4, v11
    v_lshlrev_b32 v12, 2, v1
    s_lshl_b32 s55, {J}, 11
    s_lshl_b32 s56, {X}, 8
    s_add_u32 s55, s55, s56
    s_lshl_b32 s56, {W}, 6
    s_add_u32 s55, s55, s56
    s_add_u32 s55, s55, {H5}
    s_lshl_b32 s56, {J}, 7
    s_lshl_b32 s57, {W}, 5
    s_add_u32 s56, s56, s57
    v_lshl_add_u32 v13, v1, 1, s56
    ds_read_u16 v14, v13 offset:{XL}
    ds_read_u16 v15, v13 offset:{XL+1280}
    s_cmp_eq_u32 {X}, 0
    s_cselect_b32 s56, -1, 0
    s_waitcnt lgkmcnt(0)
    v_lshlrev_b32 v14, 16, v14
    v_lshlrev_b32 v15, 16, v15
    v_and_b32 v14, s56, v14
    v_and_b32 v15, s56, v15
    s_waitcnt vmcnt(0)
    s_barrier""")
    for k in range(16):
        for rd in range(2): a(f"ds_read_b64_tr_b16 {ar(4*k+2*rd,2)}, v{5+rd} offset:{4352*k}")
    a("s_waitcnt lgkmcnt(0)")
    stamp(6)
    poll_head("L_pollE")
    for i in range(2): a(f"buffer_load_dwordx4 {vr(72+4*i)}, v7, {sWS}, s54 offen offset:{256*i} sc1")
    a("s_waitcnt vmcnt(0)")
    check([72, 76], vT, 44, "L_pollE")
    stamp(7)
    mfma(vr(64), vr(vS), vr(72), '0'); mfma(vr(64), vr(vS+4), vr(76), vr(64))
    a(f"""v_cvt_pk_bf16_f32 v64, v64, v65
    v_cvt_pk_bf16_f32 v65, v66, v67
    ds_write_b64 v8, v[64:65] offset:{CX}
    s_waitcnt lgkmcnt(0)
    s_barrier""")
    for k in range(8): a(f"ds_read_b128 {vr(80+4*k)}, v11 offset:{CX+128*k}")
    for k in range(8):
        a(f"s_waitcnt lgkmcnt({7-k})")
        for p in range(2): mfma(vr(64+4*p), vr(80+4*k), ar(4*(2*k+p)), vr(64+4*p) if k else '0')
    a(f"""v_add_f32 v64, v64, v14
    v_add_f32 v65, v65, v15
    v_add_f32 v64, v64, v70
    v_add_f32 v65, v65, v71
    v_cvt_pk_bf16_f32 v64, v64, v65
    v_bfi_b32 v64, {MSK}, v{vTn}, v64
    s_mov_b64 exec, 0xffff
    buffer_store_dword v64, v12, {sWS}, s55 offen sc1""")
    stamp(8)
    a("s_branch L_done")
    W1L, W2L = 0, 81920
    HX, HXB, H1X, H1B, ZER = 0, 1408, 4096, 192, 4608
    a("L_FG:")
    srd(sA, 18, 640*3456); srd(sB, 20, 1728*1280)
    a(f"""v_lshrrev_b32 v4, 3, v0
    v_and_b32 v5, 2, v4
    v_and_b32 v6, 7, v0
    v_xor_b32 v5, v5, v6
    v_lshlrev_b32 v5, 4, v5
    s_movk_i32 s54, 3456
    v_mad_u32_u24 v4, v4, s54, v5
    v_lshlrev_b32 v5, 1, v2
    v_xor_b32 v5, v5, v1
    v_lshlrev_b32 v5, 4, v5
    s_movk_i32 s54, 1280
    v_mad_u32_u24 v5, v2, s54, v5
    s_mul_i32 s54, {W}, {160*3456}
    s_lshl_b32 s55, s61, 7
    s_add_u32 s54, s54, s55
    s_mul_i32 s55, {W}, 20480
    s_mov_b32 m0, s55
    s_barrier""")
    for i in range(20):
        a(f"buffer_load_dwordx4 v4, {sA}, s54 offen {NT} lds")
        if i < 19: a(f"s_add_u32 m0, m0, 1024\ns_add_u32 s54, s54, {8*3456}")
    a(f"""s_mul_i32 s54, s61, {64*1280}
    s_mul_i32 s55, {W}, {16*1280}
    s_add_u32 s54, s54, s55
    s_lshl_b32 s55, {W}, 12
    s_add_u32 s55, s55, {W2L}""")
    for q in range(4):
        for cb in range(5):
            a(f"s_add_u32 m0, s55, {cb*16384+q*1024-cb*256}")
            a(f"buffer_load_dwordx4 v5, {sB}, s54 offen offset:{cb*256} {NT} lds")
        if q < 3: a(f"s_add_u32 s54, s54, {4*1280}")
    idsel(vS, 44)
    a(f"""v_lshrrev_b32 v5, 1, v10
    v_xor_b32 v5, {W}, v5
    v_lshlrev_b32 v5, 5, v5
    v_lshl_add_u32 v5, v10, 7, v5
    v_lshl_add_u32 v5, v9, 3, v5
    v_lshl_add_u32 v5, v2, 10, v5
    v_add_u32 v6, 40960, v5
    s_waitcnt vmcnt(20)
    s_barrier""")
    for k in range(20):
        for rd in range(2): a(f"ds_read_b64_tr_b16 {ar(4*k+2*rd,2)}, v{5+k//10} offset:{4096*(k%10)+512*rd}")
    a(f"""v_lshlrev_b32 v7, 8, v10
    v_lshl_add_u32 v7, v2, 11, v7
    v_lshl_add_u32 v7, v9, 3, v7
    v_add_u32 v7, {W2L}, v7
    s_mul_i32 s54, {W}, 10""")
    for i in range(10):
        a(f"""s_add_u32 s55, s54, {i}
        s_and_b32 s56, s55, 7
        s_lshr_b32 s55, s55, 3
        s_lshl_b32 s55, s55, 14
        v_xor_b32 v{20+i}, s56, v10
        v_lshl_add_u32 v{20+i}, v{20+i}, 5, v7
        v_add_u32 v{20+i}, s55, v{20+i}""")
    a("v_mov_b32 v32, 0x3f803f80\nv_mov_b32 v33, v32\nv_mov_b32 v34, v32\nv_mov_b32 v35, v32\ns_waitcnt lgkmcnt(0)")
    for k in range(20): mfma(vr(36), vr(32), ar(4*k), vr(36) if k else '0')
    a("s_waitcnt vmcnt(0)\ns_barrier")
    for i in range(10):
        for k in range(2):
            for rd in range(2): a(f"ds_read_b64_tr_b16 {ar(80+8*i+4*k+2*rd,2)}, v{20+i} offset:{8192*k+1024*rd}")
    a(f"""s_lshl_b32 s54, {W}, 11
    s_add_u32 s54, s54, {H5}
    s_add_u32 s55, s54, 8192
    s_add_u32 s56, s54, 16384
    v_and_b32 v8, 1, v2
    v_mul_u32_u24 v8, {HXB}, v8
    v_lshl_add_u32 v8, v1, 3, v8
    s_lshl_b32 s57, {W}, 7
    v_add_u32 v8, s57, v8
    v_lshrrev_b32 v11, 1, v2
    v_lshl_add_u32 v7, v11, 9, v8
    v_lshrrev_b32 v11, 3, v1
    v_xor_b32 v11, v11, v1
    v_and_b32 v11, 1, v11
    v_mul_u32_u24 v11, {HXB}, v11
    v_bfe_u32 v12, v1, 1, 1
    v_lshl_add_u32 v11, v12, 6, v11
    v_lshl_add_u32 v11, v2, 4, v11
    v_lshrrev_b32 v12, 5, v0
    v_mul_u32_u24 v13, {H1B}, v12
    v_mul_u32_u24 v12, {HXB}, v12
    v_and_b32 v14, 31, v0
    v_mad_u32_u24 v12, v14, 40, v12
    v_lshl_add_u32 v13, v1, 1, v13
    s_lshl_b32 s57, {W}, 5
    v_add_u32 v13, s57, v13
    v_and_b32 v14, 1, v1
    v_mul_u32_u24 v14, {H1B}, v14
    v_lshl_add_u32 v14, v2, 4, v14
    v_add_u32 v14, {H1X}, v14
    v_mov_b32 v15, {ZER}
    v_and_b32 v44, 14, v1""")
    for gm in range(4):
        a(f"v_cmp_eq_u32 vcc, {4*gm}, v44\nv_cndmask_b32 v{16+gm}, v15, v14, vcc")
    a(f"""v_lshrrev_b32 v14, 1, v2
    v_lshlrev_b32 v14, 12, v14
    v_and_b32 v15, 31, v0
    v_lshl_add_u32 v14, v15, 2, v14
    s_mul_i32 s57, {W}, {5*4096}
    s_lshl_b32 s58, s61, 7
    s_add_u32 s57, s57, s58
    s_add_u32 s57, s57, {H6}
    s_add_u32 s58, s57, 8192
    s_add_u32 s59, s57, 16384
    s_mov_b32 s60, 0x3f803f80
    v_mov_b32 v44, 0
    v_lshlrev_b32 v45, 2, v0
    s_waitcnt lgkmcnt(0)
    s_barrier
    ds_write_b32 v45, v44 offset:{ZER}""")
    for j in range(8): a(f"v_and_b32 v{88+j}, {MSK}, v{vT+(j&3)}")
    a("s_waitcnt lgkmcnt(0)")
    stamp(6)
    poll_head("L_pollF")
    for i in range(2): a(f"buffer_load_dwordx4 {vr(72+4*i)}, v3, {sWS}, s54 offen offset:{1024*i} sc1")
    for i in range(2): a(f"buffer_load_dwordx4 {vr(80+4*i)}, v3, {sWS}, s55 offen offset:{1024*i} sc1")
    a(f"s_cmp_ge_u32 {W}, 2\ns_cbranch_scc1 L_F3")
    for i in range(2): a(f"buffer_load_dwordx4 {vr(88+4*i)}, v3, {sWS}, s56 offen offset:{1024*i} sc1")
    a("L_F3:\ns_waitcnt vmcnt(0)")
    check([72, 76, 80, 84, 88, 92], vT, 44, "L_pollF")
    stamp(7)
    mfma(vr(64), vr(vS), vr(72), '0'); mfma(vr(68), vr(vS), vr(88), '0')
    mfma(vr(64), vr(vS), vr(76), vr(64)); mfma(vr(68), vr(vS), vr(92), vr(68))
    mfma(vr(64), vr(vS+4), vr(80), vr(64)); mfma(vr(64), vr(vS+4), vr(84), vr(64))
    a(f"""s_cmp_lt_u32 {W}, 2
    s_cselect_b32 s62, -1, 0
    v_cvt_pk_bf16_f32 v68, v68, v69
    v_cvt_pk_bf16_f32 v69, v70, v71
    v_cvt_pk_bf16_f32 v64, v64, v65
    v_cvt_pk_bf16_f32 v65, v66, v67
    ds_write_b64 v7, v[64:65] offset:{HX}
    s_mov_b32 exec_lo, s62
    s_mov_b32 exec_hi, 0
    ds_write_b64 v8, v[68:69] offset:{HX+1024}
    s_mov_b64 exec, -1
    v_mov_b32 v40, 0
    v_mov_b32 v42, 0
    s_waitcnt lgkmcnt(0)
    s_barrier""")
    for i in range(5): a(f"ds_read_b64 {vr(20+2*i,2)}, v12 offset:{HX+8*i}")
    for k in range(10): a(f"ds_read_b128 {vr(72+4*k)}, v11 offset:{HX+128*k}")
    for k in range(10):
        a(f"s_waitcnt lgkmcnt({9-k})")
        mfma(vr(64), vr(72+4*k), ar(8*k), vr(64) if k else '0')
        if k < 5: a(f"v_dot2_f32_bf16 v40, v{20+2*k}, s60, v40\nv_dot2_f32_bf16 v42, v{20+2*k}, v{20+2*k}, v42")
        mfma(vr(68), vr(72+4*k), ar(8*k+4), vr(68) if k else '0')
        if k < 5: a(f"v_dot2_f32_bf16 v40, v{21+2*k}, s60, v40\nv_dot2_f32_bf16 v42, v{21+2*k}, v{21+2*k}, v42")
        if 5 <= k < 9:
            m = ("quad_perm:[1,0,3,2]", "quad_perm:[2,3,0,1]", "row_half_mirror", "row_mirror")[k-5]
            a(f"v_add_f32_dpp v40, v40, v40 {m} row_mask:0xf bank_mask:0xf\nv_add_f32_dpp v42, v42, v42 {m} row_mask:0xf bank_mask:0xf")
    a(f"""v_mov_b32 v41, v40
    v_mov_b32 v43, v42
    v_permlane16_swap_b32 v40, v41
    v_permlane16_swap_b32 v42, v43
    v_add_f32 v40, v40, v41
    v_add_f32 v42, v42, v43
    v_mul_f32 v40, {hex(f2u(1/640))}, v40     ; mean
    v_mul_f32 v42, {hex(f2u(1/640))}, v42
    v_fma_f32 v42, -v40, v40, v42
    v_max_f32 v42, 0, v42
    v_add_f32 v42, {hex(f2u(1e-5))}, v42
    v_rsq_f32 v42, v42
    v_add_f32 v64, v64, v70
    v_fma_f32 v64, -v40, v36, v64
    v_mul_f32 v64, v64, v42          ; z
    v_mul_f32 v65, {hex(f2u(-math.log2(math.e)))}, v64
    v_exp_f32 v65, v65
    v_add_f32 v65, 1.0, v65
    v_rcp_f32 v65, v65
    v_mul_f32 v64, v64, v65
    v_cvt_pk_bf16_f32 v64, v64, v64
    ds_write_b16 v13, v64 offset:{H1X}
    s_waitcnt lgkmcnt(0)
    s_barrier""")
    for gm in range(4):
        for k in range(2): a(f"ds_read_b128 {vr(72+8*gm+4*k)}, v{16+gm} offset:{64*k}")
    accs = [64, 68, 104]
    for i in range(10):
        for k in range(2):
            if i < 4: a(f"s_waitcnt lgkmcnt({7-2*i-k})")
            acc = accs[i//4]
            mfma(vr(acc), vr(72+8*(i%4)+4*k), ar(80+8*i+4*k), '0' if (i%4 == 0 and k == 0) else vr(acc))
        if i == 7:
            a(f"v_cvt_pk_bf16_f32 v64, v64, v65\nv_bfi_b32 v64, {MSK}, v{vTn}, v64\nbuffer_store_dword v64, v14, {sWS}, s57 offen sc1")
    a(f"""v_cvt_pk_bf16_f32 v68, v68, v69
    v_bfi_b32 v68, {MSK}, v{vTn}, v68
    buffer_store_dword v68, v14, {sWS}, s58 offen sc1
    v_cvt_pk_bf16_f32 v104, v104, v105
    v_bfi_b32 v104, {MSK}, v{vTn}, v104
    s_mov_b32 exec_hi, 0
    buffer_store_dword v104, v14, {sWS}, s59 offen sc1""")
    stamp(8)
    a("s_branch L_done")
    RS = 1056
    QL, PL, ML, CC = 135168, 151552, 155648, 155904
    a("L_Y:")
    a(f"""s_lshr_b32 s54, {J}, 1
    s_lshl_b32 s54, s54, 3
    s_add_u32 s54, s54, {X}          ; chunk = 32b+s
    s_and_b32 s55, {J}, 1            ; hg
    s_lshl_b32 s56, s54, 17
    s_lshl_b32 s57, {W}, 15
    s_add_u32 s56, s56, s57
    s_mul_i32 s57, {W}, {32*RS}
    s_mov_b32 m0, s57
    s_waitcnt lgkmcnt(0)
    s_load_dword {T}, s[26:27], 0""")
    srd(sA, 6, 2*4096*1024)
    for i in range(32):
        a(f"buffer_load_dwordx4 v3, {sA}, s56 offen offset:{1024*(i%4)} {NT} lds")
        if i < 31:
            if i % 4 < 3: a("s_add_u32 m0, m0, 32")
            else: a(f"s_add_u32 m0, m0, {4*RS-96}\ns_add_u32 s56, s56, 4096")
        if i == 11:
            srd(sWS, 26, wssz); srd(sB, 12, 512*8192)
            a(f"""s_waitcnt lgkmcnt(0)
            s_not_b32 {T}, {T}
            v_and_b32 v9, 3, v0              ; cc
            v_bfe_u32 v10, v0, 2, 2          ; rr
            v_and_b32 v4, 2, v2
            v_xor_b32 v4, v4, v9""")
            tags4(48, 9, 44); tags4(56, 4, 44)
            a(f"""v_lshrrev_b32_e64 v52, v1, {T}
            v_and_b32 v5, 60, v0
            v_add_u32 v4, v4, v5
            v_lshlrev_b32 v4, 4, v4
            s_lshr_b32 s58, s54, 5
            s_lshl_b32 s58, s58, 15
            s_lshl_b32 s59, s55, 10
            s_add_u32 s58, s58, s59
            s_lshl_b32 s59, {W}, 13
            s_add_u32 s58, s58, s59
            s_add_u32 s58, s58, {H2}
            s_add_u32 s59, s58, 4096
            s_lshl_b32 s60, {W}, 12
            s_add_u32 s60, s60, {QL}
            v_add_u32 v5, s60, v3
            v_lshrrev_b32 v6, 2, v1
            v_and_b32 v6, 2, v6
            v_xor_b32 v6, v6, v2
            v_lshlrev_b32 v6, 4, v6
            v_lshl_add_u32 v6, v1, 6, v6
            v_add_u32 v6, {QL}, v6
            v_mul_u32_u24 v7, {RS}, v1
            v_lshl_add_u32 v7, v2, 4, v7
            v_add_u32 v7, s57, v7
            v_lshrrev_b32 v8, 2, v0
            v_mul_u32_u24 v8, {RS}, v8
            v_lshl_add_u32 v8, v9, 3, v8
            s_lshl_b32 s60, {W}, 8
            v_add_u32 v8, s60, v8
            v_add_u32 v11, {64*RS}, v8
            s_lshl_b32 s60, {W}, 2
            s_add_u32 s60, s60, {ML}
            v_lshl_add_u32 v12, v1, 4, s60
            v_lshlrev_b32 v13, 4, v1
            v_add_u32 v13, {ML}, v13
            v_add_u32 v15, {PL}, v3
            s_lshl_b32 s60, {W}, 10
            v_add_u32 v14, s60, v15
            v_lshlrev_b32 v16, 18, v2
            v_lshl_add_u32 v16, v1, 4, v16
            s_lshl_b32 s60, s55, 20
            s_lshl_b32 s61, {W}, 14
            s_add_u32 s60, s60, s61
            s_lshl_b32 s61, s54, 8
            s_add_u32 s60, s60, s61
            s_add_u32 s60, s60, {H3}
            v_lshlrev_b32 v17, 10, v1
            s_lshl_b32 s61, s55, 14
            s_lshl_b32 s62, s54, 4
            s_add_u32 s61, s61, s62
            s_add_u32 s61, s61, {H3S}
            v_lshlrev_b32 v18, 13, v2
            v_lshl_add_u32 v18, v1, 4, v18
            s_lshl_b32 s62, s53, 20
            s_lshl_b32 s63, {W}, 18
            s_add_u32 s62, s62, s63
            s_lshl_b32 s63, s51, 8
            s_add_u32 s62, s62, s63""")
    stamp(1)
    def kreads(kt):
        for s in range(16): a(f"ds_read_b128 {ar(64*kt+4*s)}, v7 offset:{kt*16*RS+64*s}")
    def vreads(rd):
        for wp in range(4):
            for t in range(8):
                a(f"ds_read_b64_tr_b16 {ar(128+16*t+4*wp+2*rd,2)}, v{8 if wp < 2 else 11} offset:{(32*(wp&1)+16*rd)*RS+32*t}")
    a("s_waitcnt vmcnt(16)\ns_barrier")
    kreads(0); vreads(0)
    a("s_waitcnt vmcnt(0)\ns_barrier")
    if diag: a("s_waitcnt lgkmcnt(0)")
    stamp(2)
    kreads(1); vreads(1)
    poll_head("L_pollC")
    for i in range(4): a(f"buffer_load_dwordx4 {vr(64+4*i)}, v4, {sWS}, s{58+i//2} offen offset:{2048*(i%2)} sc1")
    a("s_waitcnt vmcnt(0)")
    check([64, 68, 72, 76], 56, 44, "L_pollC")
    for i in range(4): a(f"ds_write_b128 v5, {vr(64+4*i)} offset:{1024*i}")
    a("s_waitcnt lgkmcnt(0)")
    stamp(3)
    a("s_barrier")
    Q0 = 128
    for s in range(16): a(f"ds_read_b128 {vr(Q0+4*s)}, v6 offset:{1024*s}")
    WU = 192
    for s in range(16):
        a(f"s_waitcnt lgkmcnt({15-s})")
        for kt in range(2): mfma(vr(20+4*kt), ar(64*kt+4*s), vr(Q0+4*s), vr(20+4*kt) if s else '0')
        if s % 2 == 1:
            r = s//2
            a(f"buffer_load_dwordx4 {vr(WU+4*r)}, v18, {sB}, s62 offen {NT}\ns_add_u32 s62, s62, {4*8192}")
    a("""v_max3_f32 v28, v20, v21, v22
    v_max3_f32 v29, v23, v24, v25
    v_max3_f32 v28, v28, v26, v27
    v_max_f32 v28, v28, v29
    v_mov_b32 v29, v28
    v_permlane32_swap_b32 v28, v29
    v_max_f32 v28, v28, v29
    v_mov_b32 v29, v28
    v_permlane16_swap_b32 v28, v29
    v_max_f32 v28, v28, v29
    ds_write_b32 v12, v28
    s_waitcnt lgkmcnt(0)
    s_barrier
    ds_read_b128 v[28:31], v13
    s_waitcnt lgkmcnt(0)
    v_max3_f32 v28, v28, v29, v30
    v_max_f32 v32, v28, v31""")
    for i in range(8): a(f"v_sub_f32 v{20+i}, v{20+i}, v32")
    for i in range(8): a(f"v_exp_f32 v{20+i}, v{20+i}")
    for j in range(4): a(f"v_cvt_pk_bf16_f32 v{28+j}, v{20+2*j}, v{21+2*j}")
    a(f"""ds_write_b128 v14, v[28:31]
    s_mov_b32 s63, 0x3f803f80
    v_mov_b32 v33, {T}
    v_mov_b32 v34, 0
    v_mov_b32 v35, {T}
    s_waitcnt lgkmcnt(0)
    s_barrier""")
    for wp in range(4): a(f"ds_read_b128 {vr(64+4*wp)}, v15 offset:{1024*wp}")
    O0, OP = 80, 112
    for u in range(4):
        for wp in range(4):
            if u == 0: a(f"s_waitcnt lgkmcnt({3-wp})")
            for t in (2*u, 2*u+1):
                mfma(vr(O0+4*t), vr(64+4*wp), ar(128+16*t+4*wp), vr(O0+4*t) if wp else '0')
                if u == 0:
                    jj = 2*(t&1)
                    a(f"v_dot2_f32_bf16 v34, v{64+4*wp+jj}, s63, v34\nv_dot2_f32_bf16 v34, v{65+4*wp+jj}, s63, v34")
            if u == 1 and wp == 0: a("v_mov_b32 v36, v34")
            if u == 1 and wp == 1: a("v_permlane32_swap_b32 v34, v36\nv_add_f32 v34, v34, v36\nv_mov_b32 v36, v34")
            if u == 1 and wp == 2: a("v_permlane16_swap_b32 v34, v36\nv_add_f32 v34, v34, v36")
            if u == 1 and wp == 3:
                a(f"""s_cmp_lg_u32 {W}, 0
                s_cbranch_scc1 L_nostat
                s_mov_b64 exec, 0xffff
                buffer_store_dwordx4 v[32:35], v17, {sWS}, s61 offen sc1
                s_mov_b64 exec, -1
                L_nostat:""")
            if u >= 2:
                uu = u-2; r = wp
                a(f"v_cvt_pk_bf16_f32 v{OP+4*r+uu}, v{O0+8*uu+r}, v{O0+8*uu+4+r}\nv_bfi_b32 v{OP+4*r+uu}, {MSK}, v{48+uu}, v{OP+4*r+uu}")
    for r in range(4): a(f"v_cvt_pk_bf16_f32 v{OP+4*r+2}, v{O0+16+r}, v{O0+20+r}\nv_bfi_b32 v{OP+4*r+2}, {MSK}, v50, v{OP+4*r+2}")
    for r in range(4):
        a(f"""v_cvt_pk_bf16_f32 v{OP+4*r+3}, v{O0+24+r}, v{O0+28+r}
        v_bfi_b32 v{OP+4*r+3}, {MSK}, v51, v{OP+4*r+3}
        buffer_store_dwordx4 {vr(OP+4*r)}, v16, {sWS}, s60 offen sc1""")
        if r < 3: a("s_add_u32 s60, s60, 0x10000")
    stamp(4)
    a(f"""v_mul_u32_u24 v4, 2432, v2
    s_mul_i32 s54, {W}, 576
    v_lshl_add_u32 v5, v1, 4, v4
    v_add_u32 v5, s54, v5
    s_lshl_b32 s54, {W}, 6
    v_mul_u32_u24 v6, 288, v10
    v_add3_u32 v6, v6, v4, s54
    v_lshl_add_u32 v6, v9, 3, v6
    s_waitcnt vmcnt(4)""")
    for r in range(8): a(f"ds_write_b128 v5, {vr(WU+4*r)} offset:{4*(r&3)*2432+(r>>2)*288}")
    a(f"""s_lshl_b32 s54, s51, 10
    s_add_u32 s54, s54, {H3S}
    s_lshl_b32 s55, s51, 2
    s_add_u32 s55, s55, s53
    s_lshl_b32 s56, s55, 14
    s_lshl_b32 s57, {W}, 11
    s_add_u32 s56, s56, s57
    s_add_u32 s56, s56, {H3}
    s_add_u32 s57, s56, 8192
    s_lshl_b32 s58, s55, 9
    s_lshl_b32 s59, {W}, 7
    s_add_u32 s58, s58, s59
    s_add_u32 s58, s58, {H4}
    v_lshlrev_b32 v7, 2, v0
    v_lshrrev_b32 v8, 3, v1
    v_lshl_add_u32 v8, v8, 5, v2
    s_lshl_b32 s59, {W}, 3
    v_add_lshl_u32 v8, v8, s59, 2
    v_lshrrev_b32 v11, 1, v2
    v_mul_u32_u24 v11, 288, v11
    v_lshl_add_u32 v11, v1, 4, v11
    v_and_b32 v12, 1, v2
    v_lshl_add_u32 v11, v12, 3, v11
    s_mul_i32 s59, {W}, 576
    s_add_u32 s59, s59, {CC}
    v_add_u32 v11, s59, v11
    v_and_b32 v12, 7, v1
    v_mul_u32_u24 v12, 288, v12
    v_lshl_add_u32 v12, v2, 4, v12
    v_add_u32 v12, {CC}, v12
    v_and_b32 v13, 1, v1
    v_lshlrev_b32 v13, 4, v13
    v_mov_b32 v14, 0xffff
    v_lshlrev_b32 v13, v13, v14
    v_lshrrev_b32 v14, 1, v1""")
    for i in range(8): a(f"v_cmp_eq_u32 vcc, {i}, v14\nv_cndmask_b32 v{20+i}, 0, v13, vcc")
    a("s_waitcnt lgkmcnt(0)\ns_barrier")
    for t in range(2):
        for k in range(4):
            for rd in range(2): a(f"ds_read_b64_tr_b16 {ar(16*t+4*k+2*rd,2)}, v6 offset:{k*9728+rd*1152+t*32}")
    poll_head("L_pollS")
    a(f"""buffer_load_dwordx4 v[28:31], v3, {sWS}, s54 offen sc1
    s_waitcnt vmcnt(0)
    v_bitop3_b32 v44, v29, v31, {T} bitop3:0x7e
    v_cmp_ne_u32 vcc, 0, v44
    s_cbranch_vccnz L_pollS""")
    if diag: a("s_waitcnt lgkmcnt(0)")
    stamp(5)
    def oloads():
        for i in range(4): a(f"buffer_load_dwordx4 {vr(64+4*i)}, v3, {sWS}, s{56+i//2} offen offset:{1024*(i%2)} sc1")
    oloads()
    a("v_mov_b32 v32, v28")
    red32("v_max_f32", 32, 33)
    a("v_sub_f32 v28, v28, v32\nv_exp_f32 v28, v28\nv_mul_f32 v30, v28, v30")
    red32("v_add_f32", 30, 33)
    a("""v_rcp_f32 v30, v30
    v_mul_f32 v28, v28, v30
    v_cvt_pk_bf16_f32 v28, v28, v28
    ds_bpermute_b32 v32, v8, v28
    ds_bpermute_b32 v33, v8, v28 offset:16
    s_waitcnt lgkmcnt(0)""")
    for i in range(4):
        for j in range(4): a(f"v_and_b32 v{80+4*i+j}, v{32+(i&1)}, v{20+4*(i>>1)+j}")
    a(f"s_mov_b32 {CNT}, 0\ns_branch L_pollD2\nL_pollD:\ns_add_u32 {CNT}, {CNT}, 1\ns_cmp_gt_u32 {CNT}, {POLL_MAX}\ns_cbranch_scc1 L_fail")
    oloads()
    a("L_pollD2:\ns_waitcnt vmcnt(0)")
    check([64, 68, 72, 76], 48, 44, "L_pollD")
    stamp(6)
    for i in range(4): mfma(vr(96), vr(80+4*i), vr(64+4*i), vr(96) if i else '0')
    a("""v_cvt_pk_bf16_f32 v96, v96, v97
    v_cvt_pk_bf16_f32 v97, v98, v99
    ds_write_b64 v11, v[96:97]
    s_waitcnt lgkmcnt(0)
    s_barrier""")
    for k in range(4): a(f"ds_read_b128 {vr(64+4*k)}, v12 offset:{64*k}")
    for k in range(4):
        a(f"s_waitcnt lgkmcnt({3-k})")
        for t in range(2): mfma(vr(96+4*t), vr(64+4*k), ar(16*t+4*k), vr(96+4*t) if k else '0')
    a(f"""v_add_f32 v96, v96, v98
    v_add_f32 v97, v97, v99
    v_add_f32 v100, v100, v102
    v_add_f32 v101, v101, v103
    v_permlane16_swap_b32 v96, v100
    v_permlane16_swap_b32 v97, v101
    v_add_f32 v96, v96, v100
    v_add_f32 v97, v97, v101
    v_cvt_pk_bf16_f32 v96, v96, v97
    v_bfi_b32 v96, {MSK}, v52, v96
    s_mov_b32 exec_hi, 0
    buffer_store_dword v96, v7, {sWS}, s58 offen sc1""")
    stamp(7)
    a("L_done:")
    if diag:
        a(f"""s_waitcnt vmcnt(0)
        s_memrealtime s[82:83]
        s_waitcnt lgkmcnt(0)
        s_mov_b64 exec, 1
        s_lshl_b32 s54, s2, 8
        s_lshl_b32 s55, {W}, 6
        s_add_u32 s54, s54, s55
        s_add_u32 s54, s54, {DIAG}""")
        for k in range(10): a(f"v_mov_b32 v{4+k}, s{64+2*k}")
        a(f"v_mov_b32 v14, {CNT}\nv_mov_b32 v15, 0")
        for k in range(3): a(f"buffer_store_dwordx4 {vr(4+4*k)}, v3, {sWS}, s54 offen offset:{16*k}")
    a("L_fail:\nL_end:\ns_endpgm")
    body = a.finish()
    ref = open(f"cdna_kernels/{NAME}.s.ref").read().split('\n')
    hdr = [l for l in ref if l.startswith(';') and '@launch' not in l]
    s = '\n'.join(hdr) + f"\n; @launch grid=(256,1,1) block=(256,1,1) lds={LDS_BYTES}\n"
    s += f""".amdgcn_target "amdgcn-amd-amdhsa--gfx950"
.text
.globl {NAME}_kernel
.p2align 8
.type {NAME}_kernel,@function
{NAME}_kernel:
{body}.section .rodata,"a"
.p2align 6
.amdhsa_kernel {NAME}_kernel
  .amdhsa_next_free_vgpr 512
  .amdhsa_next_free_sgpr 96
  .amdhsa_accum_offset 256
  .amdhsa_group_segment_fixed_size 0
  .amdhsa_kernarg_size 96
  .amdhsa_user_sgpr_count 2
  .amdhsa_user_sgpr_kernarg_segment_ptr 1
  .amdhsa_system_sgpr_workgroup_id_x 1
.end_amdhsa_kernel
"""
    return s
if __name__ == "__main__":
    out = sys.argv[1] if len(sys.argv) > 1 else f"k.s"
    open(out, "w").write(gen(diag=False))
    open("k_diag.s", "w").write(gen(diag=True))
```

```python
import sys, math, struct
sys.path.insert(0, 'work')
from asmlib import Asm
NAME = "sequential_preLN__compressed_kv_cla__dense_activation_silu__decode"
def f2u(x): return struct.unpack('<I', struct.pack('<f', x))[0]

H1, H2, H3S, H4, H5, H6, H3 = 0x10000, 0x30000, 0x40000, 0x50000, 0x60000, 0x68000, 0x100000
WS_SIZE = 0x300000
DIAG = 0x300000
LDS_BYTES = 163840
POLL_MAX = 40000

def gen(diag=False, opt=None, probe=None):
    if probe is not None: diag = True
    opt = opt or {}
    a = Asm()
    NT = opt.get('nt', 'nt')
    wssz = WS_SIZE + (0x40000 if diag else 0)
    sWS, sA, sB, sC = 's[28:31]', 's[32:35]', 's[36:39]', 's[40:43]'
    T, W, X, J, MSK, CNT = 's44', 's45', 's46', 's47', 's48', 's50'
    nst = [0]
    def stamp(k):
        if diag: a(f"s_memrealtime s[{64+2*k}:{65+2*k}]\ns_waitcnt lgkmcnt(0)")
    def srd(s, ptr, size):
        b = int(s[2:4]); a(f"s_mov_b32 s{b}, s{ptr}\ns_mov_b32 s{b+1}, s{ptr+1}\ns_mov_b32 s{b+2}, {size}")
    def vr(b, n=4): return f"v[{b}:{b+n-1}]"
    def ar(b, n=4): return f"a[{b}:{b+n-1}]"
    def mfma(d, A, B, c): a(f"v_mfma_f32_16x16x32_bf16 {d}, {A}, {B}, {c}")
    def check(loads, vT, tmp, retry):
        for j in range(4):
            if len(loads) == 1: a(f"v_xor_b32 v{tmp+j}, v{loads[0]+j}, v{vT+j}")
            else: a(f"v_bitop3_b32 v{tmp+j}, v{loads[0]+j}, v{loads[1]+j}, v{vT+j} bitop3:0x7e")
        for L in loads[2:]:
            for j in range(4): a(f"v_bitop3_b32 v{tmp+j}, v{tmp+j}, v{L+j}, v{vT+j} bitop3:0xf6")
        a(f"v_or3_b32 v{tmp}, v{tmp}, v{tmp+1}, v{tmp+2}")
        a(f"v_bitop3_b32 v{tmp}, v{tmp}, v{tmp+3}, {MSK} bitop3:0xa8")
        a(f"v_cmp_ne_u32 vcc, 0, v{tmp}")
        a(f"s_cbranch_vccnz {retry}")
    def poll_head(lbl):
        a(f"s_mov_b32 {CNT}, 0\n{lbl}:\ns_add_u32 {CNT}, {CNT}, 1\ns_cmp_gt_u32 {CNT}, {POLL_MAX}\ns_cbranch_scc1 L_fail")
    def red32(op, v, t):
        for m in ("quad_perm:[1,0,3,2]", "quad_perm:[2,3,0,1]", "row_half_mirror", "row_mirror"):
            a(f"{op}_dpp v{v}, v{v}, v{v} {m} row_mask:0xf bank_mask:0xf")
        a(f"v_mov_b32 v{t}, v{v}\nv_permlane16_swap_b32 v{v}, v{t}\n{op} v{v}, v{v}, v{t}")
    def tags4(vT, vchunk, tmp):
        a(f"v_lshlrev_b32 v{tmp}, 2, v{vchunk}\nv_lshrrev_b32 v{vT}, v{tmp}, {T}".replace(f"v_lshrrev_b32 v{vT}, v{tmp}, {T}", f"v_lshrrev_b32_e64 v{vT}, v{tmp}, {T}"))
        for j in range(1, 4): a(f"v_lshrrev_b32 v{vT+j}, {j}, v{vT}")
    def idsel(vS, tmp):
        a(f"""v_bfe_u32 v{tmp}, v1, 2, 1
        v_lshlrev_b32 v{tmp}, 4, v{tmp}
        v_mov_b32 v{tmp+1}, 0x3f80
        v_lshlrev_b32 v{tmp}, v{tmp}, v{tmp+1}
        v_and_b32 v{tmp+1}, 11, v1""")
        for i in range(2):
            for j in range(4):
                a(f"v_cmp_eq_u32 vcc, {8*i+j}, v{tmp+1}\nv_cndmask_b32 v{vS+4*i+j}, 0, v{tmp}, vcc")

    if diag: a("s_memrealtime s[64:65]\ns_mov_b32 s84, 0")
    a(f"""s_cmp_ge_u32 s2, 256
    s_cbranch_scc1 L_end
    s_load_dwordx16 s[4:19], s[0:1], 0
    s_load_dwordx8 s[20:27], s[0:1], 64
    v_lshrrev_b32 v1, 6, v0
    v_and_b32 v0, 63, v0
    v_readfirstlane_b32 {W}, v1
    v_and_b32 v1, 15, v0
    v_lshrrev_b32 v2, 4, v0
    v_lshlrev_b32 v3, 4, v0
    s_and_b32 {X}, s2, 7
    s_lshr_b32 {J}, s2, 4
    s_mov_b32 {MSK}, 0x00010001
    s_mov_b32 s31, 0x20000
    s_mov_b32 s35, 0x20000
    s_mov_b32 s39, 0x20000
    s_mov_b32 s43, 0x20000
    s_lshr_b32 s51, {J}, 2
    s_lshl_b32 s52, {X}, 2
    s_add_u32 s51, s51, s52          ; s51 = h = 4x + (j>>2)
    s_and_b32 s53, {J}, 3
    s_add_u32 s52, s52, {W}          ; s52 = 4x + w
    s_bitcmp1_b32 s2, 3
    s_cbranch_scc1 L_Y""")
    WQ, WUK, XL = 8192, 49152, 0
    a(f"""v_lshlrev_b32 v4, 2, v2
    v_xor_b32 v4, v4, v1
    v_lshlrev_b32 v4, 4, v4
    v_lshl_add_u32 v4, v2, 13, v4
    v_lshrrev_b32 v5, 1, v2
    v_xor_b32 v5, v5, v1
    v_lshlrev_b32 v5, 4, v5
    v_lshl_add_u32 v5, v2, 13, v5
    s_mul_i32 s54, s53, {160*8192}
    s_mul_i32 s55, {W}, {40*8192}
    s_add_u32 s54, s54, s55
    s_lshl_b32 s55, s51, 8
    s_add_u32 s54, s54, s55
    s_lshl_b32 s55, {J}, 18
    s_lshl_b32 s56, s52, 8
    s_add_u32 s55, s55, s56
    s_lshl_b32 s56, {W}, 10          ; x soffset
    s_add_u32 m0, s56, {XL}
    s_mul_i32 s57, {W}, 10240
    s_add_u32 s57, s57, {WQ}
    s_lshl_b32 s58, {W}, 13
    s_add_u32 s58, s58, {WUK}
    s_waitcnt lgkmcnt(0)
    s_load_dword {T}, s[26:27], 0""")
    srd(sC, 4, 2560); srd(sA, 8, 640*8192)
    a(f"buffer_load_dwordx4 v3, {sC}, s56 offen lds")
    a("s_mov_b32 m0, s57")
    srd(sB, 10, 512*8192)
    for i in range(10):
        a(f"buffer_load_dwordx4 v4, {sA}, s54 offen {NT} lds")
        if i < 9: a(f"s_add_u32 m0, m0, 1024\ns_add_u32 s54, s54, {4*8192}")
    def wuk(i):
        if i: a(f"v_xor_b32 v6, {32*i}, v5")
        a(f"s_add_u32 m0, s58, {1024*i}")
        a(f"buffer_load_dwordx4 {'v6' if i else 'v5'}, {sB}, s55 offen {NT} lds")
        a(f"s_add_u32 s55, s55, {4*8192}")
    wuk(0); wuk(1)
    srd(sWS, 26, wssz)
    a(f"""v_lshrrev_b32 v7, 5, v0
    v_mul_u32_u24 v7, 1280, v7
    v_and_b32 v8, 31, v0
    v_mad_u32_u24 v7, v8, 40, v7
    v_bfe_u32 v8, v1, 1, 1
    v_mul_u32_u24 v8, 1280, v8
    v_lshl_add_u32 v8, v2, 4, v8
    s_mul_i32 s56, s53, 320
    v_add_u32 v8, s56, v8
    s_waitcnt vmcnt(12) lgkmcnt(0)
    s_barrier
    s_not_b32 {T}, {T}""")
    for i in range(5): a(f"ds_read_b64 {vr(10+2*i,2)}, v7 offset:{XL+8*i}")
    for s in range(5): a(f"ds_read_b128 {vr(20+4*s)}, v8 offset:{XL+64*s}")
    a(f"""s_mov_b32 s56, 0x3f803f80
    s_mov_b32 s57, 0xffff0000
    v_mov_b32 v40, 0
    s_waitcnt lgkmcnt(5)""")
    for i in range(10): a(f"v_dot2_f32_bf16 v40, v{10+i}, s56, v40")
    red32("v_add_f32", 40, 41)
    a(f"v_mul_f32 v40, {hex(f2u(1/640))}, v40\nv_mov_b32 v42, 0\nv_mov_b32 v43, 0")
    for i in range(10):
        a(f"""v_lshlrev_b32 v44, 16, v{10+i}
        v_and_b32 v45, s57, v{10+i}
        v_sub_f32 v44, v44, v40
        v_sub_f32 v45, v45, v40
        v_fmac_f32 v42, v44, v44
        v_fmac_f32 v43, v45, v45""")
    a("v_add_f32 v42, v42, v43")
    red32("v_add_f32", 42, 41)
    a(f"""v_mov_b32 v43, {hex(f2u(1e-5))}
    v_fmac_f32 v43, {hex(f2u(1/640))}, v42
    v_rsq_f32 v42, v43
    v_mul_f32 v40, v40, v42          ; mean*rstd
    v_mov_b32 v43, v42
    v_mov_b32 v41, v40
    v_permlane32_swap_b32 v42, v43   ; v42 = rstd b0 everywhere, v43 = rstd b1
    v_permlane32_swap_b32 v40, v41
    s_mov_b32 vcc_lo, 0xcccccccc
    s_mov_b32 vcc_hi, 0xcccccccc
    v_cndmask_b32 v42, v42, v43, vcc
    v_cndmask_b32 v40, v40, v41, vcc
    s_waitcnt lgkmcnt(0)""")
    for i in range(20):
        a(f"""v_lshlrev_b32 v44, 16, v{20+i}
        v_and_b32 v45, s57, v{20+i}
        v_fma_f32 v44, v44, v42, -v40
        v_fma_f32 v45, v45, v42, -v40
        v_cvt_pk_bf16_f32 v{20+i}, v44, v45""")
    for i in range(2, 8): wuk(i)
    vT, vTn = 48, 52
    a("v_and_b32 v9, 3, v0")
    tags4(vT, 9, 44)
    a(f"""v_lshrrev_b32_e64 v{vTn}, v1, {T}
    v_bfe_u32 v10, v0, 2, 2          ; rr
    v_xor_b32 v11, {W}, v10
    v_lshlrev_b32 v11, 6, v11
    v_lshl_add_u32 v11, v10, 8, v11
    v_lshl_add_u32 v11, v9, 4, v11
    v_lshl_add_u32 v11, v2, 11, v11
    v_lshlrev_b32 v12, 8, v2
    v_lshl_add_u32 v12, v1, 4, v12
    s_lshl_b32 s54, s51, 12
    s_lshl_b32 s55, {W}, 10
    s_add_u32 s54, s54, s55
    s_lshl_b32 s55, s53, 6
    s_add_u32 s54, s54, s55
    s_add_u32 s54, s54, {H1}
    s_lshl_b32 s55, s52, 12
    s_add_u32 s55, s55, {H1}
    v_xor_b32 v13, v1, v2
    v_lshlrev_b32 v13, 4, v13
    v_lshl_add_u32 v13, v1, 9, v13
    v_add_u32 v13, s58, v13
    v_xor_b32 v14, 64, v13
    v_xor_b32 v15, 128, v13
    v_xor_b32 v16, 192, v13
    v_lshrrev_b32 v17, 5, v0
    v_lshlrev_b32 v17, 15, v17
    v_lshl_add_u32 v17, v1, 2, v17
    s_lshl_b32 s59, {J}, 11
    s_lshl_b32 s60, s52, 6
    s_add_u32 s59, s59, s60
    s_add_u32 s59, s59, {H2}
    v_not_b32 v18, v{vTn}
    v_and_b32 v19, 0x10000, v18
    v_and_b32 v18, 1, v18
    v_lshlrev_b32 v18, 16, v18""")
    stamp(1)
    a("s_waitcnt vmcnt(8)\ns_barrier")
    stamp(2)
    for s in range(5):
        for t in range(2):
            for rd in range(2):
                a(f"ds_read_b64_tr_b16 {ar((t*5+s)*4+2*rd,2)}, v11 offset:{WQ+(8*s+rd)*1024+8*t}")
    for s in range(5):
        a(f"s_waitcnt lgkmcnt({min(15,16-4*s)})")
        for t in range(2):
            mfma(vr(56+4*t), ar((t*5+s)*4), vr(20+4*s), vr(56+4*t) if s else '0')
    for j in range(4): a(f"v_cvt_pk_bf16_f32 v{64+j}, v{56+2*j}, v{57+2*j}")
    for j in range(4): a(f"v_bfi_b32 v{64+j}, {MSK}, v{vT+j}, v{64+j}")
    for j in range(4):
        a(f"""v_lshlrev_b32 v44, 16, v{64+j}
        v_and_b32 v45, s57, v{64+j}
        v_sub_f32 v44, v{56+2*j}, v44
        v_sub_f32 v45, v{57+2*j}, v45
        v_cvt_pk_bf16_f32 v{68+j}, v44, v45""")
    a("s_mov_b32 vcc_lo, 0xaaaaaaaa\ns_mov_b32 vcc_hi, 0xaaaaaaaa")
    for j in range(4): a(f"v_bfi_b32 v{68+j}, {MSK}, v{vT+j}, v{68+j}")
    for j in range(4): a(f"v_cndmask_b32 v{64+j}, v{64+j}, v{68+j}, vcc")
    a(f"""s_mov_b32 exec_lo, 0x000f000f
    s_mov_b32 exec_hi, 0x000f000f
    buffer_store_dwordx4 {vr(64)}, v12, {sWS}, s54 offen sc1
    s_mov_b64 exec, -1""")
    stamp(3)
    a("s_waitcnt vmcnt(1)")
    for t in range(2):
        for s in range(4): a(f"ds_read_b128 {ar(40+16*t+4*s)}, v{13+s} offset:{256*t}")
    poll_head("L_pollB")
    for s in range(4): a(f"buffer_load_dwordx4 {vr(72+4*s)}, v3, {sWS}, s55 offen offset:{1024*s} sc1")
    a("s_waitcnt vmcnt(0)")
    check([72, 76, 80, 84], vT, 44, "L_pollB")
    a("s_waitcnt lgkmcnt(0)")
    stamp(4)
    for s in range(4):
        for t in range(2): mfma(vr(56+4*t), vr(72+4*s), ar(40+16*t+4*s), vr(56+4*t) if s else '0')
    a(f"s_mov_b32 s56, {hex(f2u(128**-0.5*math.log2(math.e)))}\ns_mov_b32 s60, 0x07060302")
    a("""v_add_f32 v56, v56, v57
    v_add_f32 v58, v58, v59
    v_add_f32 v60, v60, v61
    v_add_f32 v62, v62, v63
    v_permlane32_swap_b32 v56, v58
    v_permlane32_swap_b32 v60, v62
    v_add_f32 v56, v56, v58
    v_add_f32 v60, v60, v62
    v_mov_b32 v57, v56
    v_mov_b32 v61, v60
    v_permlane16_swap_b32 v56, v57
    v_permlane16_swap_b32 v60, v61
    v_add_f32 v56, v56, v57
    v_add_f32 v60, v60, v61
    v_mul_f32 v56, s56, v56
    v_mul_f32 v60, s56, v60
    v_add_u32 v56, v56, v18
    v_add_u32 v60, v60, v19
    v_perm_b32 v56, v60, v56, s60""")
    a(f"""v_bfi_b32 v56, {MSK}, v{vTn}, v56
    s_mov_b32 exec_lo, 0x0000ffff
    s_mov_b32 exec_hi, 0x0000ffff
    buffer_store_dword v56, v17, {sWS}, s59 offen sc1
    s_mov_b64 exec, -1""")
    stamp(5)
    vS = 56
    a(f"""s_cmp_lt_u32 {J}, 10
    s_cbranch_scc1 L_E
    s_sub_u32 s61, {J}, 10
    s_lshl_b32 s61, s61, 3
    s_add_u32 s61, s61, {X}          ; idx
    s_cmp_lt_u32 s61, 27
    s_cbranch_scc1 L_FG
    s_sub_u32 s61, s61, 27           ; rho
    s_cmp_ge_u32 s61, 20
    s_cbranch_scc1 L_done
    s_cmp_lg_u32 {W}, 0
    s_cbranch_scc1 L_done""")
    if diag: a("s_mov_b32 s84, 3")
    idsel(vS, 44)
    srd(sA, 22, 2560)
    a(f"""v_lshrrev_b32 v4, 3, v0
    v_lshlrev_b32 v4, 8, v4
    v_and_b32 v5, 7, v0
    v_lshl_add_u32 v4, v5, 4, v4
    s_lshr_b32 s54, s61, 1
    s_lshl_b32 s54, s54, 11
    s_and_b32 s55, s61, 1
    s_lshl_b32 s55, s55, 7
    s_add_u32 s54, s54, s55
    s_add_u32 s54, s54, {H5}
    s_lshl_b32 s55, s61, 12
    s_add_u32 s55, s55, {H6}
    v_mul_u32_u24 v6, 1280, v2
    v_lshl_add_u32 v6, v1, 3, v6
    s_lshl_b32 s56, s61, 6""")
    for j in range(4): a(f"v_and_b32 v{84+j}, {MSK}, v{vT+j}")
    poll_head("L_pollR1")
    a(f"buffer_load_dwordx4 {vr(68)}, v4, {sWS}, s54 offen sc1\ns_waitcnt vmcnt(0)")
    check([68], vT, 44, "L_pollR1")
    mfma(vr(64), vr(vS), vr(68), '0')
    stamp(6)
    poll_head("L_pollR2")
    for i in range(3): a(f"buffer_load_dwordx4 {vr(72+4*i)}, v3, {sWS}, s55 offen offset:{1024*i} sc1")
    a(f"""s_mov_b32 exec_lo, 0x00ffffff
    s_mov_b32 exec_hi, 0
    buffer_load_dwordx4 {vr(84)}, v3, {sWS}, s55 offen offset:3072 sc1
    s_mov_b64 exec, -1
    s_waitcnt vmcnt(0)""")
    check([72, 76, 80, 84], vT, 44, "L_pollR2")
    stamp(7)
    for i in range(4): mfma(vr(64), vr(vS), vr(72+4*i), vr(64))
    for r in range(4): a(f"v_add_f32_dpp v{64+r}, v{64+r}, v{64+r} row_ror:8 row_mask:0xf bank_mask:0xf")
    a(f"""v_cvt_pk_bf16_f32 v64, v64, v65
    v_cvt_pk_bf16_f32 v65, v66, v67
    s_mov_b32 exec_lo, 0x00ff00ff
    s_mov_b32 exec_hi, 0
    buffer_store_dwordx2 v[64:65], v6, {sA}, s56 offen
    s_cmp_lg_u32 s61, 0
    s_cbranch_scc1 L_done
    s_mov_b64 exec, 1
    v_mov_b32 v4, {T}
    buffer_store_dword v4, v3, {sWS}, 0 offen sc1
    s_branch L_done""")
    CX, CXB, WOL = 4096, 1152, 81920
    a("L_E:")
    if diag: a("s_mov_b32 s84, 1")
    srd(sA, 14, 4096*1280)
    a(f"""v_lshrrev_b32 v4, 3, v0
    v_and_b32 v5, 2, v4
    v_and_b32 v6, 7, v0
    v_xor_b32 v5, v5, v6
    v_lshlrev_b32 v5, 4, v5
    s_movk_i32 s54, 1280
    v_mad_u32_u24 v4, v4, s54, v5
    s_mul_i32 s54, s52, {128*1280}
    s_lshl_b32 s55, {J}, 7
    s_add_u32 s54, s54, s55
    s_mul_i32 s55, {W}, {16*1088}
    s_add_u32 m0, s55, {WOL}""")
    for i in range(16):
        a(f"buffer_load_dwordx4 v4, {sA}, s54 offen {NT} lds")
        if i < 15: a(f"s_add_u32 m0, m0, 1088\ns_add_u32 s54, s54, {8*1280}")
    idsel(vS, 44)
    a(f"""v_lshrrev_b32 v5, 1, v10
    v_xor_b32 v5, {W}, v5
    v_lshlrev_b32 v5, 5, v5
    v_lshl_add_u32 v5, v10, 7, v5
    v_lshl_add_u32 v5, v9, 3, v5
    s_movk_i32 s54, 1088
    v_mad_u32_u24 v5, v2, s54, v5
    v_add_u32 v5, {WOL}, v5
    v_add_u32 v6, 512, v5            ; rd=1
    v_lshlrev_b32 v7, 9, v2
    v_lshl_add_u32 v7, v1, 4, v7
    s_lshl_b32 s54, s52, 11
    s_add_u32 s54, s54, {H4}
    v_and_b32 v8, 1, v2
    v_mul_u32_u24 v8, {CXB}, v8
    v_lshrrev_b32 v11, 1, v2
    v_lshl_add_u32 v8, v11, 7, v8
    v_lshl_add_u32 v8, v1, 3, v8
    s_lshl_b32 s55, {W}, 8
    v_add_u32 v8, s55, v8
    v_and_b32 v11, 1, v1
    v_mul_u32_u24 v11, {CXB}, v11
    v_bfe_u32 v12, v1, 1, 1
    v_lshl_add_u32 v11, v12, 6, v11
    v_lshl_add_u32 v11, v2, 4, v11
    v_lshlrev_b32 v12, 2, v1
    s_lshl_b32 s55, {J}, 11
    s_lshl_b32 s56, {X}, 8
    s_add_u32 s55, s55, s56
    s_lshl_b32 s56, {W}, 6
    s_add_u32 s55, s55, s56
    s_add_u32 s55, s55, {H5}
    s_lshl_b32 s56, {J}, 7
    s_lshl_b32 s57, {W}, 5
    s_add_u32 s56, s56, s57
    v_lshl_add_u32 v13, v1, 1, s56
    ds_read_u16 v14, v13 offset:{XL}
    ds_read_u16 v15, v13 offset:{XL+1280}
    s_cmp_eq_u32 {X}, 0
    s_cselect_b32 s56, -1, 0
    s_waitcnt lgkmcnt(0)
    v_lshlrev_b32 v14, 16, v14
    v_lshlrev_b32 v15, 16, v15
    v_and_b32 v14, s56, v14
    v_and_b32 v15, s56, v15
    s_waitcnt vmcnt(0)
    s_barrier""")
    for k in range(16):
        for rd in range(2): a(f"ds_read_b64_tr_b16 {ar(4*k+2*rd,2)}, v{5+rd} offset:{4352*k}")
    a("s_waitcnt lgkmcnt(0)")
    stamp(6)
    poll_head("L_pollE")
    for i in range(2): a(f"buffer_load_dwordx4 {vr(72+4*i)}, v7, {sWS}, s54 offen offset:{256*i} sc1")
    a("s_waitcnt vmcnt(0)")
    check([72, 76], vT, 44, "L_pollE")
    stamp(7)
    mfma(vr(64), vr(vS), vr(72), '0'); mfma(vr(64), vr(vS+4), vr(76), vr(64))
    a(f"""v_cvt_pk_bf16_f32 v64, v64, v65
    v_cvt_pk_bf16_f32 v65, v66, v67
    ds_write_b64 v8, v[64:65] offset:{CX}
    s_waitcnt lgkmcnt(0)
    s_barrier""")
    for k in range(8): a(f"ds_read_b128 {vr(80+4*k)}, v11 offset:{CX+128*k}")
    for k in range(8):
        a(f"s_waitcnt lgkmcnt({7-k})")
        for p in range(2): mfma(vr(64+4*p), vr(80+4*k), ar(4*(2*k+p)), vr(64+4*p) if k else '0')
    a(f"""v_add_f32 v64, v64, v14
    v_add_f32 v65, v65, v15
    v_add_f32 v64, v64, v70
    v_add_f32 v65, v65, v71
    v_cvt_pk_bf16_f32 v64, v64, v65
    v_bfi_b32 v64, {MSK}, v{vTn}, v64
    s_mov_b64 exec, 0xffff
    buffer_store_dword v64, v12, {sWS}, s55 offen sc1""")
    stamp(8)
    a("s_branch L_done")
    W1L, W2L = 0, 81920
    HX, HXB, H1X, H1B, ZER = 0, 1408, 4096, 192, 4608
    a("L_FG:")
    if diag: a("s_mov_b32 s84, 2")
    srd(sA, 18, 640*3456); srd(sB, 20, 1728*1280)
    a(f"""v_lshrrev_b32 v4, 3, v0
    v_and_b32 v5, 2, v4
    v_and_b32 v6, 7, v0
    v_xor_b32 v5, v5, v6
    v_lshlrev_b32 v5, 4, v5
    s_movk_i32 s54, 3456
    v_mad_u32_u24 v4, v4, s54, v5
    v_lshlrev_b32 v5, 1, v2
    v_xor_b32 v5, v5, v1
    v_lshlrev_b32 v5, 4, v5
    s_movk_i32 s54, 1280
    v_mad_u32_u24 v5, v2, s54, v5
    s_mul_i32 s54, {W}, {160*3456}
    s_lshl_b32 s55, s61, 7
    s_add_u32 s54, s54, s55
    s_mul_i32 s55, {W}, 20480
    s_mov_b32 m0, s55
    s_barrier""")
    for i in range(20):
        a(f"buffer_load_dwordx4 v4, {sA}, s54 offen {NT} lds")
        if i < 19: a(f"s_add_u32 m0, m0, 1024\ns_add_u32 s54, s54, {8*3456}")
    a(f"""s_mul_i32 s54, s61, {64*1280}
    s_mul_i32 s55, {W}, {16*1280}
    s_add_u32 s54, s54, s55
    s_lshl_b32 s55, {W}, 12
    s_add_u32 s55, s55, {W2L}""")
    for q in range(4):
        for cb in range(5):
            a(f"s_add_u32 m0, s55, {cb*16384+q*1024-cb*256}")
            a(f"buffer_load_dwordx4 v5, {sB}, s54 offen offset:{cb*256} {NT} lds")
        if q < 3: a(f"s_add_u32 s54, s54, {4*1280}")
    idsel(vS, 44)
    a(f"""v_lshrrev_b32 v5, 1, v10
    v_xor_b32 v5, {W}, v5
    v_lshlrev_b32 v5, 5, v5
    v_lshl_add_u32 v5, v10, 7, v5
    v_lshl_add_u32 v5, v9, 3, v5
    v_lshl_add_u32 v5, v2, 10, v5
    v_add_u32 v6, 40960, v5
    s_waitcnt vmcnt(20)
    s_barrier""")
    for k in range(20):
        for rd in range(2): a(f"ds_read_b64_tr_b16 {ar(4*k+2*rd,2)}, v{5+k//10} offset:{4096*(k%10)+512*rd}")
    a(f"""v_lshlrev_b32 v7, 8, v10
    v_lshl_add_u32 v7, v2, 11, v7
    v_lshl_add_u32 v7, v9, 3, v7
    v_add_u32 v7, {W2L}, v7
    s_mul_i32 s54, {W}, 10""")
    for i in range(10):
        a(f"""s_add_u32 s55, s54, {i}
        s_and_b32 s56, s55, 7
        s_lshr_b32 s55, s55, 3
        s_lshl_b32 s55, s55, 14
        v_xor_b32 v{20+i}, s56, v10
        v_lshl_add_u32 v{20+i}, v{20+i}, 5, v7
        v_add_u32 v{20+i}, s55, v{20+i}""")
    a("v_mov_b32 v32, 0x3f803f80\nv_mov_b32 v33, v32\nv_mov_b32 v34, v32\nv_mov_b32 v35, v32\ns_waitcnt lgkmcnt(0)")
    for k in range(20): mfma(vr(36), vr(32), ar(4*k), vr(36) if k else '0')
    a("s_waitcnt vmcnt(0)\ns_barrier")
    for i in range(10):
        for k in range(2):
            for rd in range(2): a(f"ds_read_b64_tr_b16 {ar(80+8*i+4*k+2*rd,2)}, v{20+i} offset:{8192*k+1024*rd}")
    a(f"""s_lshl_b32 s54, {W}, 11
    s_add_u32 s54, s54, {H5}
    s_add_u32 s55, s54, 8192
    s_add_u32 s56, s54, 16384
    v_and_b32 v8, 1, v2
    v_mul_u32_u24 v8, {HXB}, v8
    v_lshl_add_u32 v8, v1, 3, v8
    s_lshl_b32 s57, {W}, 7
    v_add_u32 v8, s57, v8
    v_lshrrev_b32 v11, 1, v2
    v_lshl_add_u32 v7, v11, 9, v8
    v_lshrrev_b32 v11, 3, v1
    v_xor_b32 v11, v11, v1
    v_and_b32 v11, 1, v11
    v_mul_u32_u24 v11, {HXB}, v11
    v_bfe_u32 v12, v1, 1, 1
    v_lshl_add_u32 v11, v12, 6, v11
    v_lshl_add_u32 v11, v2, 4, v11
    v_lshrrev_b32 v12, 5, v0
    v_mul_u32_u24 v13, {H1B}, v12
    v_mul_u32_u24 v12, {HXB}, v12
    v_and_b32 v14, 31, v0
    v_mad_u32_u24 v12, v14, 40, v12
    v_lshl_add_u32 v13, v1, 1, v13
    s_lshl_b32 s57, {W}, 5
    v_add_u32 v13, s57, v13
    v_and_b32 v14, 1, v1
    v_mul_u32_u24 v14, {H1B}, v14
    v_lshl_add_u32 v14, v2, 4, v14
    v_add_u32 v14, {H1X}, v14
    v_mov_b32 v15, {ZER}
    v_and_b32 v44, 14, v1""")
    for gm in range(4):
        a(f"v_cmp_eq_u32 vcc, {4*gm}, v44\nv_cndmask_b32 v{16+gm}, v15, v14, vcc")
    a(f"""v_lshrrev_b32 v14, 1, v2
    v_lshlrev_b32 v14, 12, v14
    v_and_b32 v15, 31, v0
    v_lshl_add_u32 v14, v15, 2, v14
    s_mul_i32 s57, {W}, {5*4096}
    s_lshl_b32 s58, s61, 7
    s_add_u32 s57, s57, s58
    s_add_u32 s57, s57, {H6}
    s_add_u32 s58, s57, 8192
    s_add_u32 s59, s57, 16384
    s_mov_b32 s60, 0x3f803f80
    v_mov_b32 v44, 0
    v_lshlrev_b32 v45, 2, v0
    s_waitcnt lgkmcnt(0)
    s_barrier
    ds_write_b32 v45, v44 offset:{ZER}""")
    for j in range(8): a(f"v_and_b32 v{88+j}, {MSK}, v{vT+(j&3)}")
    a("s_waitcnt lgkmcnt(0)")
    stamp(6)
    poll_head("L_pollF")
    for i in range(2): a(f"buffer_load_dwordx4 {vr(72+4*i)}, v3, {sWS}, s54 offen offset:{1024*i} sc1")
    for i in range(2): a(f"buffer_load_dwordx4 {vr(80+4*i)}, v3, {sWS}, s55 offen offset:{1024*i} sc1")
    a(f"s_cmp_ge_u32 {W}, 2\ns_cbranch_scc1 L_F3")
    for i in range(2): a(f"buffer_load_dwordx4 {vr(88+4*i)}, v3, {sWS}, s56 offen offset:{1024*i} sc1")
    a("L_F3:\ns_waitcnt vmcnt(0)")
    check([72, 76, 80, 84, 88, 92], vT, 44, "L_pollF")
    stamp(7)
    mfma(vr(64), vr(vS), vr(72), '0'); mfma(vr(68), vr(vS), vr(88), '0')
    mfma(vr(64), vr(vS), vr(76), vr(64)); mfma(vr(68), vr(vS), vr(92), vr(68))
    mfma(vr(64), vr(vS+4), vr(80), vr(64)); mfma(vr(64), vr(vS+4), vr(84), vr(64))
    a(f"""s_cmp_lt_u32 {W}, 2
    s_cselect_b32 s62, -1, 0
    v_cvt_pk_bf16_f32 v68, v68, v69
    v_cvt_pk_bf16_f32 v69, v70, v71
    v_cvt_pk_bf16_f32 v64, v64, v65
    v_cvt_pk_bf16_f32 v65, v66, v67
    ds_write_b64 v7, v[64:65] offset:{HX}
    s_mov_b32 exec_lo, s62
    s_mov_b32 exec_hi, 0
    ds_write_b64 v8, v[68:69] offset:{HX+1024}
    s_mov_b64 exec, -1
    v_mov_b32 v40, 0
    v_mov_b32 v42, 0
    s_waitcnt lgkmcnt(0)
    s_barrier""")
    for i in range(5): a(f"ds_read_b64 {vr(20+2*i,2)}, v12 offset:{HX+8*i}")
    for k in range(10): a(f"ds_read_b128 {vr(72+4*k)}, v11 offset:{HX+128*k}")
    for k in range(10):
        a(f"s_waitcnt lgkmcnt({9-k})")
        mfma(vr(64), vr(72+4*k), ar(8*k), vr(64) if k else '0')
        if k < 5: a(f"v_dot2_f32_bf16 v40, v{20+2*k}, s60, v40\nv_dot2_f32_bf16 v42, v{20+2*k}, v{20+2*k}, v42")
        mfma(vr(68), vr(72+4*k), ar(8*k+4), vr(68) if k else '0')
        if k < 5: a(f"v_dot2_f32_bf16 v40, v{21+2*k}, s60, v40\nv_dot2_f32_bf16 v42, v{21+2*k}, v{21+2*k}, v42")
        if 5 <= k < 9:
            m = ("quad_perm:[1,0,3,2]", "quad_perm:[2,3,0,1]", "row_half_mirror", "row_mirror")[k-5]
            a(f"v_add_f32_dpp v40, v40, v40 {m} row_mask:0xf bank_mask:0xf\nv_add_f32_dpp v42, v42, v42 {m} row_mask:0xf bank_mask:0xf")
    a(f"""v_mov_b32 v41, v40
    v_mov_b32 v43, v42
    v_permlane16_swap_b32 v40, v41
    v_permlane16_swap_b32 v42, v43
    v_add_f32 v40, v40, v41
    v_add_f32 v42, v42, v43
    v_mul_f32 v40, {hex(f2u(1/640))}, v40     ; mean
    v_mul_f32 v42, {hex(f2u(1/640))}, v42
    v_fma_f32 v42, -v40, v40, v42
    v_max_f32 v42, 0, v42
    v_add_f32 v42, {hex(f2u(1e-5))}, v42
    v_rsq_f32 v42, v42
    v_add_f32 v64, v64, v70
    v_fma_f32 v64, -v40, v36, v64
    v_mul_f32 v64, v64, v42          ; z
    v_mul_f32 v65, {hex(f2u(-math.log2(math.e)))}, v64
    v_exp_f32 v65, v65
    v_add_f32 v65, 1.0, v65
    v_rcp_f32 v65, v65
    v_mul_f32 v64, v64, v65
    v_cvt_pk_bf16_f32 v64, v64, v64
    ds_write_b16 v13, v64 offset:{H1X}
    s_waitcnt lgkmcnt(0)
    s_barrier""")
    for gm in range(4):
        for k in range(2): a(f"ds_read_b128 {vr(72+8*gm+4*k)}, v{16+gm} offset:{64*k}")
    accs = [64, 68, 104]
    for i in range(10):
        for k in range(2):
            if i < 4: a(f"s_waitcnt lgkmcnt({7-2*i-k})")
            acc = accs[i//4]
            mfma(vr(acc), vr(72+8*(i%4)+4*k), ar(80+8*i+4*k), '0' if (i%4 == 0 and k == 0) else vr(acc))
        if i == 7:
            a(f"v_cvt_pk_bf16_f32 v64, v64, v65\nv_bfi_b32 v64, {MSK}, v{vTn}, v64\nbuffer_store_dword v64, v14, {sWS}, s57 offen sc1")
    a(f"""v_cvt_pk_bf16_f32 v68, v68, v69
    v_bfi_b32 v68, {MSK}, v{vTn}, v68
    buffer_store_dword v68, v14, {sWS}, s58 offen sc1
    v_cvt_pk_bf16_f32 v104, v104, v105
    v_bfi_b32 v104, {MSK}, v{vTn}, v104
    s_mov_b32 exec_hi, 0
    buffer_store_dword v104, v14, {sWS}, s59 offen sc1""")
    stamp(8)
    a("s_branch L_done")
    RS = 1056
    QL, PL, ML, CC = 135168, 151552, 155648, 155904
    a("L_Y:")
    if diag: a("s_mov_b32 s84, 4")
    a(f"""s_lshr_b32 s54, {J}, 1
    s_lshl_b32 s54, s54, 3
    s_add_u32 s54, s54, {X}          ; chunk = 32b+s
    s_and_b32 s55, {J}, 1            ; hg
    s_lshl_b32 s56, s54, 17
    s_lshl_b32 s57, {W}, 15
    s_add_u32 s56, s56, s57
    s_mul_i32 s57, {W}, {32*RS}
    s_mov_b32 m0, s57
    s_waitcnt lgkmcnt(0)
    s_load_dword {T}, s[26:27], 0""")
    srd(sA, 6, 2*4096*1024)
    for i in range(32):
        a(f"buffer_load_dwordx4 v3, {sA}, s56 offen offset:{1024*(i%4)} {NT} lds")
        if i < 31:
            if i % 4 < 3: a("s_add_u32 m0, m0, 32")
            else: a(f"s_add_u32 m0, m0, {4*RS-96}\ns_add_u32 s56, s56, 4096")
        if i == 11:
            srd(sWS, 26, wssz); srd(sB, 12, 512*8192)
            a(f"""s_waitcnt lgkmcnt(0)
            s_not_b32 {T}, {T}
            v_and_b32 v9, 3, v0              ; cc
            v_bfe_u32 v10, v0, 2, 2          ; rr
            v_and_b32 v4, 2, v2
            v_xor_b32 v4, v4, v9""")
            tags4(48, 9, 44); tags4(56, 4, 44)
            a(f"""v_lshrrev_b32_e64 v52, v1, {T}
            v_and_b32 v5, 60, v0
            v_add_u32 v4, v4, v5
            v_lshlrev_b32 v4, 4, v4
            s_lshr_b32 s58, s54, 5
            s_lshl_b32 s58, s58, 15
            s_lshl_b32 s59, s55, 10
            s_add_u32 s58, s58, s59
            s_lshl_b32 s59, {W}, 13
            s_add_u32 s58, s58, s59
            s_add_u32 s58, s58, {H2}
            s_add_u32 s59, s58, 4096
            s_lshl_b32 s60, {W}, 12
            s_add_u32 s60, s60, {QL}
            v_add_u32 v5, s60, v3
            v_lshrrev_b32 v6, 2, v1
            v_and_b32 v6, 2, v6
            v_xor_b32 v6, v6, v2
            v_lshlrev_b32 v6, 4, v6
            v_lshl_add_u32 v6, v1, 6, v6
            v_add_u32 v6, {QL}, v6
            v_mul_u32_u24 v7, {RS}, v1
            v_lshl_add_u32 v7, v2, 4, v7
            v_add_u32 v7, s57, v7
            v_lshrrev_b32 v8, 2, v0
            v_mul_u32_u24 v8, {RS}, v8
            v_lshl_add_u32 v8, v9, 3, v8
            s_lshl_b32 s60, {W}, 8
            v_add_u32 v8, s60, v8
            v_add_u32 v11, {64*RS}, v8
            s_lshl_b32 s60, {W}, 2
            s_add_u32 s60, s60, {ML}
            v_lshl_add_u32 v12, v1, 4, s60
            v_lshlrev_b32 v13, 4, v1
            v_add_u32 v13, {ML}, v13
            v_add_u32 v15, {PL}, v3
            s_lshl_b32 s60, {W}, 10
            v_add_u32 v14, s60, v15
            v_lshlrev_b32 v16, 18, v2
            v_lshl_add_u32 v16, v1, 4, v16
            s_lshl_b32 s60, s55, 20
            s_lshl_b32 s61, {W}, 14
            s_add_u32 s60, s60, s61
            s_lshl_b32 s61, s54, 8
            s_add_u32 s60, s60, s61
            s_add_u32 s60, s60, {H3}
            v_lshlrev_b32 v17, 10, v1
            s_lshl_b32 s61, s55, 14
            s_lshl_b32 s62, s54, 4
            s_add_u32 s61, s61, s62
            s_add_u32 s61, s61, {H3S}
            v_lshlrev_b32 v18, 13, v2
            v_lshl_add_u32 v18, v1, 4, v18
            s_lshl_b32 s62, s53, 20
            s_lshl_b32 s63, {W}, 18
            s_add_u32 s62, s62, s63
            s_lshl_b32 s63, s51, 8
            s_add_u32 s62, s62, s63""")
    stamp(1)
    def kreads(kt):
        for s in range(16): a(f"ds_read_b128 {ar(64*kt+4*s)}, v7 offset:{kt*16*RS+64*s}")
    def vreads(rd):
        for wp in range(4):
            for t in range(8):
                a(f"ds_read_b64_tr_b16 {ar(128+16*t+4*wp+2*rd,2)}, v{8 if wp < 2 else 11} offset:{(32*(wp&1)+16*rd)*RS+32*t}")
    a("s_waitcnt vmcnt(16)\ns_barrier")
    kreads(0); vreads(0)
    a("s_waitcnt vmcnt(0)\ns_barrier")
    if diag: a("s_waitcnt lgkmcnt(0)")
    stamp(2)
    kreads(1); vreads(1)
    poll_head("L_pollC")
    for i in range(4): a(f"buffer_load_dwordx4 {vr(64+4*i)}, v4, {sWS}, s{58+i//2} offen offset:{2048*(i%2)} sc1")
    a("s_waitcnt vmcnt(0)")
    check([64, 68, 72, 76], 56, 44, "L_pollC")
    for i in range(4): a(f"ds_write_b128 v5, {vr(64+4*i)} offset:{1024*i}")
    a("s_waitcnt lgkmcnt(0)")
    stamp(3)
    a("s_barrier")
    Q0 = 128
    for s in range(16): a(f"ds_read_b128 {vr(Q0+4*s)}, v6 offset:{1024*s}")
    WU = 192
    for s in range(16):
        a(f"s_waitcnt lgkmcnt({15-s})")
        for kt in range(2): mfma(vr(20+4*kt), ar(64*kt+4*s), vr(Q0+4*s), vr(20+4*kt) if s else '0')
        if s % 2 == 1:
            r = s//2
            a(f"buffer_load_dwordx4 {vr(WU+4*r)}, v18, {sB}, s62 offen {NT}\ns_add_u32 s62, s62, {4*8192}")
    a("""v_max3_f32 v28, v20, v21, v22
    v_max3_f32 v29, v23, v24, v25
    v_max3_f32 v28, v28, v26, v27
    v_max_f32 v28, v28, v29
    v_mov_b32 v29, v28
    v_permlane32_swap_b32 v28, v29
    v_max_f32 v28, v28, v29
    v_mov_b32 v29, v28
    v_permlane16_swap_b32 v28, v29
    v_max_f32 v28, v28, v29
    ds_write_b32 v12, v28
    s_waitcnt lgkmcnt(0)
    s_barrier
    ds_read_b128 v[28:31], v13
    s_waitcnt lgkmcnt(0)
    v_max3_f32 v28, v28, v29, v30
    v_max_f32 v32, v28, v31""")
    for i in range(8): a(f"v_sub_f32 v{20+i}, v{20+i}, v32")
    for i in range(8): a(f"v_exp_f32 v{20+i}, v{20+i}")
    for j in range(4): a(f"v_cvt_pk_bf16_f32 v{28+j}, v{20+2*j}, v{21+2*j}")
    a(f"""ds_write_b128 v14, v[28:31]
    s_mov_b32 s63, 0x3f803f80
    v_mov_b32 v33, {T}
    v_mov_b32 v34, 0
    v_mov_b32 v35, {T}
    s_waitcnt lgkmcnt(0)
    s_barrier""")
    for wp in range(4): a(f"ds_read_b128 {vr(64+4*wp)}, v15 offset:{1024*wp}")
    O0, OP = 80, 112
    for u in range(4):
        for wp in range(4):
            if u == 0: a(f"s_waitcnt lgkmcnt({3-wp})")
            for t in (2*u, 2*u+1):
                mfma(vr(O0+4*t), vr(64+4*wp), ar(128+16*t+4*wp), vr(O0+4*t) if wp else '0')
                if u == 0:
                    jj = 2*(t&1)
                    a(f"v_dot2_f32_bf16 v34, v{64+4*wp+jj}, s63, v34\nv_dot2_f32_bf16 v34, v{65+4*wp+jj}, s63, v34")
            if u == 1 and wp == 0: a("v_mov_b32 v36, v34")
            if u == 1 and wp == 1: a("v_permlane32_swap_b32 v34, v36\nv_add_f32 v34, v34, v36\nv_mov_b32 v36, v34")
            if u == 1 and wp == 2: a("v_permlane16_swap_b32 v34, v36\nv_add_f32 v34, v34, v36")
            if u == 1 and wp == 3:
                a(f"""s_cmp_lg_u32 {W}, 0
                s_cbranch_scc1 L_nostat
                s_mov_b64 exec, 0xffff
                buffer_store_dwordx4 v[32:35], v17, {sWS}, s61 offen sc1
                s_mov_b64 exec, -1
                L_nostat:""")
            if u >= 2:
                uu = u-2; r = wp
                a(f"v_cvt_pk_bf16_f32 v{OP+4*r+uu}, v{O0+8*uu+r}, v{O0+8*uu+4+r}\nv_bfi_b32 v{OP+4*r+uu}, {MSK}, v{48+uu}, v{OP+4*r+uu}")
    for r in range(4): a(f"v_cvt_pk_bf16_f32 v{OP+4*r+2}, v{O0+16+r}, v{O0+20+r}\nv_bfi_b32 v{OP+4*r+2}, {MSK}, v50, v{OP+4*r+2}")
    for r in range(4):
        a(f"""v_cvt_pk_bf16_f32 v{OP+4*r+3}, v{O0+24+r}, v{O0+28+r}
        v_bfi_b32 v{OP+4*r+3}, {MSK}, v51, v{OP+4*r+3}
        buffer_store_dwordx4 {vr(OP+4*r)}, v16, {sWS}, s60 offen sc1""")
        if r < 3: a("s_add_u32 s60, s60, 0x10000")
    stamp(4)
    a(f"""v_mul_u32_u24 v4, 2432, v2
    s_mul_i32 s54, {W}, 576
    v_lshl_add_u32 v5, v1, 4, v4
    v_add_u32 v5, s54, v5
    s_lshl_b32 s54, {W}, 6
    v_mul_u32_u24 v6, 288, v10
    v_add3_u32 v6, v6, v4, s54
    v_lshl_add_u32 v6, v9, 3, v6
    s_waitcnt vmcnt(4)""")
    for r in range(8): a(f"ds_write_b128 v5, {vr(WU+4*r)} offset:{4*(r&3)*2432+(r>>2)*288}")
    a(f"""s_lshl_b32 s54, s51, 10
    s_add_u32 s54, s54, {H3S}
    s_lshl_b32 s55, s51, 2
    s_add_u32 s55, s55, s53
    s_lshl_b32 s56, s55, 14
    s_lshl_b32 s57, {W}, 11
    s_add_u32 s56, s56, s57
    s_add_u32 s56, s56, {H3}
    s_add_u32 s57, s56, 8192
    s_lshl_b32 s58, s55, 9
    s_lshl_b32 s59, {W}, 7
    s_add_u32 s58, s58, s59
    s_add_u32 s58, s58, {H4}
    v_lshlrev_b32 v7, 2, v0
    v_lshrrev_b32 v8, 3, v1
    v_lshl_add_u32 v8, v8, 5, v2
    s_lshl_b32 s59, {W}, 3
    v_add_lshl_u32 v8, v8, s59, 2
    v_lshrrev_b32 v11, 1, v2
    v_mul_u32_u24 v11, 288, v11
    v_lshl_add_u32 v11, v1, 4, v11
    v_and_b32 v12, 1, v2
    v_lshl_add_u32 v11, v12, 3, v11
    s_mul_i32 s59, {W}, 576
    s_add_u32 s59, s59, {CC}
    v_add_u32 v11, s59, v11
    v_and_b32 v12, 7, v1
    v_mul_u32_u24 v12, 288, v12
    v_lshl_add_u32 v12, v2, 4, v12
    v_add_u32 v12, {CC}, v12
    v_and_b32 v13, 1, v1
    v_lshlrev_b32 v13, 4, v13
    v_mov_b32 v14, 0xffff
    v_lshlrev_b32 v13, v13, v14
    v_lshrrev_b32 v14, 1, v1""")
    for i in range(8): a(f"v_cmp_eq_u32 vcc, {i}, v14\nv_cndmask_b32 v{20+i}, 0, v13, vcc")
    a("s_waitcnt lgkmcnt(0)\ns_barrier")
    for t in range(2):
        for k in range(4):
            for rd in range(2): a(f"ds_read_b64_tr_b16 {ar(16*t+4*k+2*rd,2)}, v6 offset:{k*9728+rd*1152+t*32}")
    poll_head("L_pollS")
    a(f"""buffer_load_dwordx4 v[28:31], v3, {sWS}, s54 offen sc1
    s_waitcnt vmcnt(0)
    v_bitop3_b32 v44, v29, v31, {T} bitop3:0x7e
    v_cmp_ne_u32 vcc, 0, v44
    s_cbranch_vccnz L_pollS""")
    if diag: a("s_waitcnt lgkmcnt(0)")
    stamp(5)
    def oloads():
        for i in range(4): a(f"buffer_load_dwordx4 {vr(64+4*i)}, v3, {sWS}, s{56+i//2} offen offset:{1024*(i%2)} sc1")
    oloads()
    a("v_mov_b32 v32, v28")
    red32("v_max_f32", 32, 33)
    a("v_sub_f32 v28, v28, v32\nv_exp_f32 v28, v28\nv_mul_f32 v30, v28, v30")
    red32("v_add_f32", 30, 33)
    a("""v_rcp_f32 v30, v30
    v_mul_f32 v28, v28, v30
    v_cvt_pk_bf16_f32 v28, v28, v28
    ds_bpermute_b32 v32, v8, v28
    ds_bpermute_b32 v33, v8, v28 offset:16
    s_waitcnt lgkmcnt(0)""")
    for i in range(4):
        for j in range(4): a(f"v_and_b32 v{80+4*i+j}, v{32+(i&1)}, v{20+4*(i>>1)+j}")
    a(f"s_mov_b32 {CNT}, 0\ns_branch L_pollD2\nL_pollD:\ns_add_u32 {CNT}, {CNT}, 1\ns_cmp_gt_u32 {CNT}, {POLL_MAX}\ns_cbranch_scc1 L_fail")
    oloads()
    a("L_pollD2:\ns_waitcnt vmcnt(0)")
    check([64, 68, 72, 76], 48, 44, "L_pollD")
    stamp(6)
    for i in range(4): mfma(vr(96), vr(80+4*i), vr(64+4*i), vr(96) if i else '0')
    a("""v_cvt_pk_bf16_f32 v96, v96, v97
    v_cvt_pk_bf16_f32 v97, v98, v99
    ds_write_b64 v11, v[96:97]
    s_waitcnt lgkmcnt(0)
    s_barrier""")
    for k in range(4): a(f"ds_read_b128 {vr(64+4*k)}, v12 offset:{64*k}")
    for k in range(4):
        a(f"s_waitcnt lgkmcnt({3-k})")
        for t in range(2): mfma(vr(96+4*t), vr(64+4*k), ar(16*t+4*k), vr(96+4*t) if k else '0')
    a(f"""v_add_f32 v96, v96, v98
    v_add_f32 v97, v97, v99
    v_add_f32 v100, v100, v102
    v_add_f32 v101, v101, v103
    v_permlane16_swap_b32 v96, v100
    v_permlane16_swap_b32 v97, v101
    v_add_f32 v96, v96, v100
    v_add_f32 v97, v97, v101
    v_cvt_pk_bf16_f32 v96, v96, v97
    v_bfi_b32 v96, {MSK}, v52, v96
    s_mov_b32 exec_hi, 0
    buffer_store_dword v96, v7, {sWS}, s58 offen sc1""")
    stamp(7)
    a("L_done:")
    if probe is not None:
        role, k = probe
        a("s_waitcnt vmcnt(0)\ns_memrealtime s[82:83]\ns_waitcnt lgkmcnt(0)")
        a(f"s_cmp_lg_u32 s84, {dict(X=0,E=1,FG=2,R=3,Y=4)[role]}" if role not in (None,'X') else ("s_cmp_eq_u32 s84, 4" if role == 'X' else "s_cmp_lg_u32 s84, s84"))
        a("s_cbranch_scc1 L_end")
        a(f"s_sub_u32 s54, s{64+2*k}, s64\ns_lshl_b32 s54, s54, 2\ns_add_u32 s54, s54, 4000")
        a("s_min_u32 s54, s54, 30000")
        a("L_spin:\ns_memrealtime s[86:87]\ns_waitcnt lgkmcnt(0)\ns_sub_u32 s55, s86, s64\ns_cmp_lt_u32 s55, s54\ns_cbranch_scc1 L_spin")
    elif diag:
        a(f"""s_waitcnt vmcnt(0)
        s_memrealtime s[82:83]
        s_waitcnt lgkmcnt(0)
        s_mov_b64 exec, 1
        s_lshl_b32 s54, s2, 8
        s_lshl_b32 s55, {W}, 6
        s_add_u32 s54, s54, s55
        s_add_u32 s54, s54, {DIAG}""")
        for k in range(10): a(f"v_mov_b32 v{4+k}, s{64+2*k}")
        a(f"v_mov_b32 v14, {CNT}\nv_mov_b32 v15, 0")
        for k in range(3): a(f"buffer_store_dwordx4 {vr(4+4*k)}, v3, {sWS}, s54 offen offset:{16*k}")
    a("L_fail:\nL_end:\ns_endpgm")
    body = a.finish()
    ref = open(f"cdna_kernels/{NAME}.s.ref").read().split('\n')
    hdr = [l for l in ref if l.startswith(';') and '@launch' not in l]
    s = '\n'.join(hdr) + f"\n; @launch grid=(256,1,1) block=(256,1,1) lds={LDS_BYTES}\n"
    s += f""".amdgcn_target "amdgcn-amd-amdhsa--gfx950"
.text
.globl {NAME}_kernel
.p2align 8
.type {NAME}_kernel,@function
{NAME}_kernel:
{body}.section .rodata,"a"
.p2align 6
.amdhsa_kernel {NAME}_kernel
  .amdhsa_next_free_vgpr 512
  .amdhsa_next_free_sgpr 96
  .amdhsa_accum_offset 256
  .amdhsa_group_segment_fixed_size 0
  .amdhsa_kernarg_size 96
  .amdhsa_user_sgpr_count 2
  .amdhsa_user_sgpr_kernarg_segment_ptr 1
  .amdhsa_system_sgpr_workgroup_id_x 1
.end_amdhsa_kernel
"""
    return s
if __name__ == "__main__":
    out = sys.argv[1] if len(sys.argv) > 1 else f"k.s"
    open(out, "w").write(gen(diag=False))
    open("k_diag.s", "w").write(gen(diag=True))
```

```python
import sys; sys.path.insert(0,'work')
import gen
import json
specs = sys.argv[1:]
for i, sp in enumerate(specs):
    role, k = sp.split(':')
    open(f'p{i}.s','w').write(gen.gen(probe=(None if role=='-' else role, int(k))))
```

```python
import sys, math, struct
sys.path.insert(0, 'work')
from asmlib import Asm
NAME = "sequential_preLN__compressed_kv_cla__dense_activation_silu__decode"
def f2u(x): return struct.unpack('<I', struct.pack('<f', x))[0]

H1, H2, H3S, H4, H5, H6, H3 = 0x10000, 0x30000, 0x40000, 0x50000, 0x60000, 0x68000, 0x100000
LOC = 0x80000
HINT = 0xF0000
LOC_POLLS, HINT_POLLS, POLL_MAX = 256, 64, 40000
WS_SIZE = 0x300000
DIAG = 0x300000
LDS_BYTES = 163840
OOB = 0x40000000

def gen(diag=False, opt=None, probe=None):
    if probe is not None: diag = True
    opt = opt or {}
    a = Asm()
    NT = opt.get('nt', 'nt')
    wssz = WS_SIZE + (0x40000 if diag else 0)
    sWS, sA, sB, sC = 's[28:31]', 's[32:35]', 's[36:39]', 's[40:43]'
    T, W, X, J, MSK, CNT, PRM = 's44', 's45', 's46', 's47', 's48', 's50', 's3'
    QM = 90
    def stamp(k):
        if diag and not opt.get('cst') and not opt.get('lite'): a(f"s_waitcnt lgkmcnt(0)\ns_memrealtime s[{64+2*k}:{65+2*k}]\ns_waitcnt lgkmcnt(0)")
    def cstamp(k, grp='C'):
        if diag and opt.get('cst') == grp: a(f"s_waitcnt lgkmcnt(0)\ns_memtime s[{64+2*k}:{65+2*k}]\ns_waitcnt lgkmcnt(0)")
    def srd(s, ptr, size):
        b = int(s[2:4]); a(f"s_mov_b32 s{b}, s{ptr}\ns_mov_b32 s{b+1}, s{ptr+1}\ns_mov_b32 s{b+2}, {size}")
    def vr(b, n=4): return f"v[{b}:{b+n-1}]"
    def ar(b, n=4): return f"a[{b}:{b+n-1}]"
    def sp(b): return f"s[{b}:{b+1}]"
    def mfma(d, A, B, c): a(f"v_mfma_f32_16x16x32_bf16 {d}, {A}, {B}, {c}")
    def ld(L): a(f"buffer_load_dwordx4 {vr(L[0])}, v{L[1]}, {sWS}, {L[2]} offen offset:{L[3]} sc1")
    def poll(lbl, loads, vN, tmp, issued=False, local=None, onloc=None, each=None, optn=0, optc=None):
        n = len(loads)
        a(f"s_mov_b32 {CNT}, 0")
        if issued: a(f"s_branch {lbl}_chk")
        a(f"{lbl}:")
        if local:
            a(f"s_cmp_gt_u32 {CNT}, {LOC_POLLS}\ns_cselect_b32 s49, {LOC}, 0\ns_xor_b32 {local}, {local}, s49")
        if optn: a(f"{optc}\ns_cbranch_scc1 {lbl}_s1")
        for i, L in enumerate(loads):
            if optn and i == optn: a(f"{lbl}_s1:")
            ld(L)
        a(f"s_add_u32 {CNT}, {CNT}, 1\ns_cmp_gt_u32 {CNT}, {POLL_MAX}\ns_cbranch_scc1 L_fail")
        if onloc:
            a(f"s_cmp_lg_u32 {CNT}, {LOC_POLLS}\ns_cbranch_scc1 {lbl}_chk"); onloc(); a("s_waitcnt vmcnt(0)")
        a(f"{lbl}_chk:")
        if optn: a(f"{optc}\ns_cbranch_scc1 {lbl}_s2")
        for i, L in enumerate(loads):
            r = L[0]; N = L[4] if len(L) > 4 else vN
            t = tmp + 1 if i < optn else tmp
            first = i == 0 or i == optn
            if optn and i == optn: a(f"{lbl}_s2:")
            a(f"s_waitcnt vmcnt({n-1-i})")
            for j in range(4): a(f"v_xor_b32 v{r+j}, v{r+j}, v{N+j}")
            if each: each(i)
            src = (f"v{tmp+1}" if (optn and i == optn) else MSK) if first else f"v{t}"
            a(f"v_bitop3_b32 v{t}, v{r}, v{r+1}, {src} bitop3:0x80\nv_bitop3_b32 v{t}, v{t}, v{r+2}, v{r+3} bitop3:0x80")
        a(f"v_cmp_ne_u32 vcc, {MSK}, v{tmp}\ns_cbranch_vccnz {lbl}")
    def pack(d, lo, hi, tag):
        a(f"v_perm_b32 v{d}, v{hi}, v{lo}, {PRM}\nv_bfi_b32 v{d}, {MSK}, v{tag}, v{d}")
    def red32(op, v, t):
        for m in ("quad_perm:[1,0,3,2]", "quad_perm:[2,3,0,1]", "row_half_mirror", "row_mirror"):
            a(f"{op}_dpp v{v}, v{v}, v{v} {m} row_mask:0xf bank_mask:0xf")
        a(f"v_mov_b32 v{t}, v{v}\nv_permlane16_swap_b32 v{v}, v{t}\n{op} v{v}, v{v}, v{t}")
    def tags4(vT, vchunk, tmp):
        a(f"v_lshlrev_b32 v{tmp}, 2, v{vchunk}\nv_lshrrev_b32_e64 v{vT}, v{tmp}, {T}")
        for j in range(1, 4): a(f"v_lshrrev_b32 v{vT+j}, {j}, v{vT}")
    def ntags(vN, vT):
        for j in range(4): a(f"v_bitop3_b32 v{vN+j}, v{vT+j}, v{vT+j}, {MSK} bitop3:0x0a")
    def keep(v, mask_lo, mask_hi, tmp):
        a(f"s_mov_b32 vcc_lo, {mask_lo}\ns_mov_b32 vcc_hi, {mask_hi}\nv_mov_b32 v{tmp}, {OOB}\nv_cndmask_b32 v{v}, v{tmp}, v{v}, vcc")
    def idsel(vS, tmp):
        a(f"""v_bfe_u32 v{tmp}, v1, 2, 1
        v_lshlrev_b32 v{tmp}, 4, v{tmp}
        v_mov_b32 v{tmp+1}, 0x3f80
        v_lshlrev_b32 v{tmp}, v{tmp}, v{tmp+1}""")
        for i in range(2):
            for j in range(4):
                m = (0x11 << (8*i+j)) * 0x10001
                a(f"s_mov_b32 vcc_lo, {hex(m)}\ns_mov_b32 vcc_hi, vcc_lo\nv_cndmask_b32 v{vS+4*i+j}, 0, v{tmp}, vcc")
    def hint_addr(sreg, kind, slot=None):
        a(f"s_lshl_b32 {sreg}, {X}, 7\ns_add_u32 {sreg}, {sreg}, {HINT+kind*0x1000}")
        if slot: a(f"s_lshl_b32 s49, {slot}, 2\ns_add_u32 {sreg}, {sreg}, s49")
    def hint_lane(v, tmp):
        a(f"s_cmp_eq_u32 {W}, 0\ns_cselect_b32 s49, 1, 0\nv_mov_b32 v{v}, 0"); keep(v, 's49', '0', tmp)
    def hint_ld(sreg, va, vd): a(f"buffer_load_dword v{vd}, v{va}, {sWS}, {sreg} offen sc1")
    def hintwait(lbl, sreg, mask, va, vd, issued=False, polls=HINT_POLLS):
        a(f"s_mov_b64 exec, {mask}\ns_mov_b32 {CNT}, 0")
        if issued: a(f"s_branch {lbl}_chk")
        a(f"{lbl}:")
        hint_ld(sreg, va, vd)
        a(f"""s_add_u32 {CNT}, {CNT}, 1
        s_cmp_gt_u32 {CNT}, {polls}
        s_cbranch_scc1 {lbl}_go
        {lbl}_chk:
        s_waitcnt vmcnt(0)
        v_cmp_ne_u32 vcc, {T}, v{vd}
        s_cbranch_vccnz {lbl}
        {lbl}_go:
        s_mov_b64 exec, -1""")

    if diag: a("s_memrealtime s[64:65]\ns_mov_b32 s86, 0")
    a(f"""s_cmp_ge_u32 s2, 256
    s_cbranch_scc1 L_end
    s_load_dwordx16 s[4:19], s[0:1], 0
    s_load_dwordx8 s[20:27], s[0:1], 64""")
    if opt.get('pf', 1):
        a(f"""s_getpc_b64 s[62:63]
        s_lshr_b32 s30, s2, 3
        s_lshl_b32 s30, s30, 9
        v_lshl_add_u32 v4, v0, 7, s30
        v_min_u32 v4, CODE_LAST, v4
        v_cmp_gt_u32 vcc, 4, v0
        s_and_saveexec_b64 s[88:89], vcc
        s_cbranch_execz L_nopf
        global_load_dword v255, v4, s[62:63]
        L_nopf:
        s_mov_b64 exec, -1""")
    a(f"""v_lshrrev_b32 v1, 6, v0
    v_and_b32 v0, 63, v0
    v_readfirstlane_b32 {W}, v1
    v_and_b32 v1, 15, v0
    v_lshrrev_b32 v2, 4, v0
    v_lshlrev_b32 v3, 4, v0
    v_and_b32 v9, 3, v0              ; cc
    v_bfe_u32 v10, v0, 2, 2          ; rr
    s_and_b32 {X}, s2, 7
    s_lshr_b32 {J}, s2, 4
    s_mov_b32 {MSK}, 0x00010001
    s_mov_b32 {PRM}, 0x07060302
    s_mov_b32 s30, {wssz}
    s_mov_b32 s31, 0x20000
    s_mov_b32 s35, 0x20000
    s_mov_b32 s39, 0x20000
    s_mov_b32 s43, 0x20000
    s_lshr_b32 s51, {J}, 2
    s_lshl_b32 s52, {X}, 2
    s_and_b32 s53, {J}, 3
    s_bitcmp1_b32 s2, 3
    s_cbranch_scc1 L_Y""")
    XL, XN, WQ, WUK = 0, 4096, 8192, 49152
    mix = opt.get('mix', 0); h1loc = opt.get('h1loc', 1)
    a(f"""v_lshlrev_b32 v4, 2, v2
    v_xor_b32 v4, v4, v1""")
    if mix: a("""v_lshrrev_b32 v5, 3, v4
        v_and_b32 v4, 7, v4
        v_lshl_add_u32 v4, v5, 5, v4""")
    a(f"""v_lshlrev_b32 v4, 4, v4
    v_lshl_add_u32 v4, v2, 13, v4
    v_xor_b32 v5, v2, v1
    v_lshlrev_b32 v5, 4, v5
    v_lshl_add_u32 v5, v2, 13, v5
    v_xor_b32 v6, 64, v5
    v_xor_b32 v54, 128, v5
    v_xor_b32 v55, 192, v5
    v_lshrrev_b32 v7, 5, v0
    v_mul_u32_u24 v7, 1280, v7
    v_and_b32 v8, 31, v0
    v_mad_u32_u24 v7, v8, 40, v7
    s_mul_i32 s54, s53, {160*8192}
    s_lshl_b32 s55, {W}, 15
    s_add_u32 s54, s54, s55
    s_lshl_b32 s55, {X}, 10
    s_add_u32 s54, s54, s55
    s_lshl_b32 s55, s51, {7 if mix else 8}
    s_add_u32 s54, s54, s55
    s_add_u32 s52, s52, {W}          ; s52 = 4x + w
    s_lshl_b32 s55, {J}, 18
    s_lshl_b32 s56, s52, 8
    s_add_u32 s55, s55, s56
    s_lshl_b32 s57, {W}, 10
    s_mov_b32 m0, s57
    s_lshl_b32 s58, {W}, 13
    s_add_u32 s58, s58, {WUK}
    s_lshl_b32 s59, {X}, 14
    s_lshl_b32 s60, {J}, 10
    s_add_u32 s59, s59, s60
    s_add_u32 s59, s59, {H1+(LOC if h1loc else 0)+(0 if opt.get('h1touch', 1) else OOB)}
    s_mov_b32 s34, {640*8192}
    s_mov_b32 s38, {512*8192}
    s_mov_b32 s42, 2560
    s_cmp_eq_u32 {W}, 3
    s_waitcnt lgkmcnt(0)
    s_load_dword {T}, s[26:27], 0
    s_mov_b64 s[40:41], s[4:5]
    s_mov_b64 s[32:33], s[8:9]
    s_mov_b64 s[28:29], s[26:27]
    s_cbranch_scc1 L_x3
    buffer_load_dwordx4 v3, {sC}, s57 offen lds
    s_branch L_x0
    L_x3:
    buffer_load_dwordx4 v[252:255], v3, {sWS}, s59 offen sc1
    L_x0:
    s_add_u32 m0, s57, {WQ}""")
    order = opt.get('order', 'qqqqqqqqqquuuuuuuu')
    assert order.count('q') == 10 and order.count('u') == 8
    a(f"""s_mov_b64 s[36:37], s[10:11]
    s_add_u32 s61, s57, {WQ}
    s_mov_b32 s57, 0xffff0000""")
    cnt = {'q': 0, 'u': 0}; nxt = [0]
    def more():
        if nxt[0] >= 18: return
        c = order[nxt[0]]; i = cnt[c]; cnt[c] += 1; nxt[0] += 1
        if c == 'q':
            if nxt[0] > 1: a(f"s_add_u32 m0, s61, {4096*i}")
            a(f"buffer_load_dwordx4 v4, {sA}, s54 offen {NT} lds")
            if i < 9: a(f"s_add_u32 s54, s54, {16*8192}")
        else:
            a(f"s_add_u32 m0, s58, {1024*i}\nbuffer_load_dwordx4 v{(5, 6, 54, 55)[i&3]}, {sB}, s55 offen {NT} lds")
            if i < 7: a(f"s_add_u32 s55, s55, {4*8192}")
    npre = 11
    for i in range(npre): more()
    def after(c, k):
        idx = [i for i, ch in enumerate(order) if ch == c][k-1]
        return 17 - idx
    xr = [12, 13, 14, 15, 16, 17, 18, 19, 46, 47]
    a(f"s_waitcnt vmcnt({npre}) lgkmcnt(0)\ns_barrier\ns_not_b32 {T}, {T}")
    for i in range(5): a(f"ds_read_b64 {vr(xr[2*i],2)}, v7 offset:{XL+8*i}")
    more()
    a("s_waitcnt lgkmcnt(0)")
    for i in range(10): a(f"v_lshlrev_b32 v{20+2*i}, 16, v{xr[i]}\nv_and_b32 v{21+2*i}, s57, v{xr[i]}")
    more()
    a("v_pk_add_f32 v[40:41], v[20:21], v[22:23]\nv_pk_add_f32 v[42:43], v[24:25], v[26:27]")
    for i in range(4, 10): a(f"v_pk_add_f32 {vr(40+2*(i&1),2)}, {vr(40+2*(i&1),2)}, {vr(20+2*i,2)}")
    a("v_pk_add_f32 v[40:41], v[40:41], v[42:43]\nv_add_f32 v40, v40, v41")
    red32("v_add_f32", 40, 41)
    more()
    a(f"v_mul_f32 v40, {hex(f2u(-1/640))}, v40")
    for i in range(10): a(f"v_pk_add_f32 {vr(20+2*i,2)}, {vr(20+2*i,2)}, v[40:41] op_sel_hi:[1,0]")
    a("v_pk_mul_f32 v[42:43], v[20:21], v[20:21]\nv_pk_mul_f32 v[44:45], v[22:23], v[22:23]")
    for i in range(2, 10): a(f"v_pk_fma_f32 {vr(42+2*(i&1),2)}, {vr(20+2*i,2)}, {vr(20+2*i,2)}, {vr(42+2*(i&1),2)}")
    more()
    a("v_pk_add_f32 v[42:43], v[42:43], v[44:45]\nv_add_f32 v42, v42, v43")
    red32("v_add_f32", 42, 41)
    a(f"""v_mov_b32 v43, {hex(f2u(1e-5))}
    v_fmac_f32 v43, {hex(f2u(1/640))}, v42
    v_rsq_f32 v42, v43
    v_mul_f32 v42, {hex(f2u(128**-0.5*math.log2(math.e)))}, v42""")
    more()
    for i in range(10): a(f"v_pk_mul_f32 {vr(20+2*i,2)}, {vr(20+2*i,2)}, v[42:43] op_sel_hi:[1,0]")
    for i in range(10): a(f"v_cvt_pk_bf16_f32 v{xr[i]}, v{20+2*i}, v{21+2*i}")
    for i in range(5): a(f"ds_write_b64 v7, {vr(xr[2*i],2)} offset:{XN+8*i}")
    more()
    vT, vTn, vTs, vN = 48, 52, 53, 112
    tags4(vT, 9, 44); ntags(vN, vT)
    a(f"""v_lshrrev_b32_e64 v{vTn}, v1, {T}
    v_bfe_u32 v44, v0, 1, 4
    v_and_b32 v45, 1, v0
    v_lshl_add_u32 v44, v45, 4, v44
    v_lshrrev_b32_e64 v{vTs}, v44, {T}
    v_lshlrev_b32 v{vTs}, 16, v{vTs}
    v_mul_u32_u24 v8, 1280, v45
    v_lshl_add_u32 v8, v2, 4, v8
    s_mul_i32 s56, s53, 320
    v_add_u32 v8, s56, v8
    v_xor_b32 v11, {W}, v10
    v_lshlrev_b32 v11, 6, v11
    v_lshl_add_u32 v11, v10, 8, v11
    v_lshl_add_u32 v11, v9, 4, v11
    v_lshl_add_u32 v11, v2, 11, v11
    v_lshlrev_b32 v12, 8, v2
    v_lshl_add_u32 v12, v1, 4, v12""")
    keep(12, '0x000f000f', '0x000f000f', 44)
    for s in range(5): a(f"ds_read_b128 {vr(20+4*s)}, v8 offset:{XN+64*s}")
    while nxt[0] < 18: more()
    if mix:
        a(f"""s_lshl_b32 s54, s51, 11
        s_and_b32 s55, {W}, 2
        s_lshl_b32 s55, s55, 12
        s_add_u32 s54, s54, s55
        s_and_b32 s55, {W}, 1
        s_lshl_b32 s55, s55, 10
        s_add_u32 s54, s54, s55""")
    else:
        a(f"s_lshl_b32 s54, s51, 12\ns_lshl_b32 s55, {W}, 10\ns_add_u32 s54, s54, s55")
    a(f"""s_lshl_b32 s55, {X}, 14
    s_add_u32 s54, s54, s55
    s_lshl_b32 s55, s53, 6
    s_add_u32 s54, s54, s55
    s_add_u32 s54, s54, {H1}
    s_add_u32 s56, s54, {LOC}
    s_lshl_b32 s55, s52, 12
    s_add_u32 s55, s55, {H1+(LOC if h1loc else 0)}
    v_xor_b32 v13, v1, v2
    v_lshlrev_b32 v13, 4, v13
    v_lshl_add_u32 v13, v1, 8, v13
    v_add_u32 v13, s58, v13
    v_xor_b32 v14, 64, v13
    v_xor_b32 v15, 128, v13
    v_xor_b32 v16, 192, v13
    v_lshrrev_b32 v17, 5, v0
    v_lshlrev_b32 v17, 15, v17
    v_and_b32 v44, 31, v0
    v_lshl_add_u32 v17, v44, 1, v17
    s_lshl_b32 s59, {J}, 11
    s_lshl_b32 s60, s52, 6
    s_add_u32 s59, s59, s60
    s_add_u32 s59, s59, {H2}
    s_mov_b32 vcc_lo, 0xcccccccc
    s_mov_b32 vcc_hi, 0xcccccccc
    v_mov_b32 v44, 0xfffe0000
    v_mov_b32 v45, 0x10000
    v_cndmask_b32 v18, 0, v44, vcc
    v_cndmask_b32 v19, 0, v45, vcc
    s_mov_b32 s60, 0x10000""")
    stamp(1)
    def a_reads(s):
        for t in range(2):
            for rd in range(2): a(f"ds_read_b64_tr_b16 {ar((t*5+s)*4+2*rd,2)}, v11 offset:{WQ+(8*s+rd)*1024+8*t}")
    def a_mm(s):
        for t in range(2): mfma(vr(56+4*t), ar((t*5+s)*4), vr(20+4*s), vr(56+4*t) if s else '0')
    a(f"s_waitcnt vmcnt({after('q', 6)})\ns_barrier")
    for s in range(3): a_reads(s)
    for s in range(3):
        a(f"s_waitcnt lgkmcnt({8-4*s})"); a_mm(s)
    a(f"s_waitcnt vmcnt({after('q', 10)})\ns_barrier")
    stamp(2)
    a_reads(3); a_reads(4)
    a("s_waitcnt lgkmcnt(4)"); a_mm(3); a("s_waitcnt lgkmcnt(0)"); a_mm(4)
    for j in range(8): a(f"v_and_or_b32 v{64+j}, v{56+j}, v18, v19")
    for j in range(4): a(f"v_pk_add_f32 {vr(56+2*j,2)}, {vr(56+2*j,2)}, {vr(64+2*j,2)} neg_lo:[0,1] neg_hi:[0,1]")
    for j in range(4): a(f"v_perm_b32 v{64+j}, v{57+2*j}, v{56+2*j}, {PRM}")
    for j in range(4): a(f"v_bfi_b32 v{64+j}, {MSK}, v{vT+j}, v{64+j}")
    def h1_global(): a(f"buffer_store_dwordx4 {vr(64)}, v12, {sWS}, s54 offen sc1")
    if h1loc: a(f"buffer_store_dwordx4 {vr(64)}, v12, {sWS}, s56 offen")
    else: h1_global()
    stamp(3)
    qh = opt.get('qhint', 1)
    hint_lane(54, 44)
    a(f"v_mov_b32 v55, {T}\nv_lshlrev_b32 v47, 2, v0")
    if qh: hint_addr('s62', 1, J)
    LB = [(72+4*s, 3, 's55', 1024*s) for s in range(4)]
    a(f"s_waitcnt vmcnt({1+opt.get('b_early', 0)})")
    for L in LB: ld(L)
    a("s_waitcnt vmcnt(5)")
    stamp(10)
    for s in range(4):
        for t in range(2): a(f"ds_read_b128 {ar(40+16*t+4*s)}, v{13+s} offset:{4096*t}")
    if h1loc: poll("L_pollB", LB, vN, 44, issued=True, local='s55', onloc=h1_global)
    else: poll("L_pollB", LB, vN, 44, issued=True)
    a("s_waitcnt lgkmcnt(0)")
    if diag: a(f"s_mov_b32 s87, {CNT}")
    stamp(4)
    if qh == 3: a(f"s_barrier\nbuffer_store_dword v55, v54, {sWS}, s62 offen")
    for s in range(4):
        for t in range(2): mfma(vr(56+4*t), vr(72+4*s), ar(40+16*t+4*s), vr(56+4*t) if s else '0')
    a(f"""v_pk_add_f32 v[56:57], v[56:57], v[58:59]
    v_pk_add_f32 v[60:61], v[60:61], v[62:63]
    v_permlane32_swap_b32 v56, v57
    v_permlane32_swap_b32 v60, v61
    v_add_f32 v56, v56, v57
    v_add_f32 v60, v60, v61
    v_permlane16_swap_b32 v56, v60
    v_add_f32 v56, v56, v60
    v_bfi_b32 v56, s60, v{vTs}, v56""")
    if qh != 3: a("s_barrier")
    if qh == 1: a(f"buffer_store_dword v55, v54, {sWS}, s62 offen")
    a(f"buffer_store_short_d16_hi v56, v17, {sWS}, s59 offen sc1")
    if qh == 2: a(f"buffer_store_dword v55, v54, {sWS}, s62 offen")
    stamp(5)
    if opt.get('ackst'): a("s_waitcnt vmcnt(0)"); stamp(1)
    if h1loc: h1_global()
    if opt.get('ackwait', 1): a("s_waitcnt vmcnt(0)")
    vS = 56
    a(f"""s_cmp_lt_u32 {J}, 10
    s_cbranch_scc1 L_E
    s_sub_u32 s61, {J}, 10
    s_lshl_b32 s61, s61, 3
    s_add_u32 s61, s61, {X}          ; idx
    s_cmp_lt_u32 s61, 27
    s_cbranch_scc1 L_FG
    s_sub_u32 s61, s61, 27           ; rho
    s_cmp_ge_u32 s61, 20
    s_cbranch_scc1 L_done
    s_cmp_lg_u32 {W}, 0
    s_cbranch_scc1 L_done""")
    if diag: a("s_mov_b32 s86, 3")
    idsel(vS, 44)
    srd(sA, 22, 2560)
    a(f"""v_lshrrev_b32 v4, 3, v0
    v_lshlrev_b32 v4, 8, v4
    v_and_b32 v5, 7, v0
    v_lshl_add_u32 v4, v5, 4, v4
    s_lshr_b32 s54, s61, 1
    s_lshl_b32 s54, s54, 11
    s_and_b32 s55, s61, 1
    s_lshl_b32 s55, s55, 7
    s_add_u32 s54, s54, s55
    s_add_u32 s54, s54, {H5}
    s_lshl_b32 s55, s61, 12
    s_add_u32 s55, s55, {H6}
    v_mul_u32_u24 v6, 1280, v2
    v_lshl_add_u32 v6, v1, 3, v6
    s_lshl_b32 s56, s61, 6""")
    keep(6, '0x00ff00ff', '0', 44)
    a("v_mov_b32 v5, v3")
    keep(5, '0x00ffffff', '0', 44)
    a(f"v_mov_b32 v44, {MSK}")
    for j in range(4): a(f"v_cndmask_b32 v{116+j}, v44, v{vN+j}, vcc")
    if opt.get('ehint', 0):
        hint_addr('s62', 2); hintwait("L_hintR1", 's62', '0x3ff', 47, 28, polls=256)
    poll("L_pollR1", [(68, 4, 's54', 0)], vN, 44)
    mfma(vr(64), vr(vS), vr(68), '0')
    stamp(6)
    if opt.get('fhint', 0):
        hint_addr('s62', 3); hintwait("L_hintR2", 's62', 7, 47, 28)
    poll("L_pollR2", [(72+4*i, 3, 's55', 1024*i) for i in range(3)] + [(84, 5, 's55', 3072, 116)], vN, 44)
    stamp(7)
    for i in range(4): mfma(vr(64), vr(vS), vr(72+4*i), vr(64))
    for r in range(4): a(f"v_add_f32_dpp v{64+r}, v{64+r}, v{64+r} row_ror:8 row_mask:0xf bank_mask:0xf")
    a(f"""v_cvt_pk_bf16_f32 v64, v64, v65
    v_cvt_pk_bf16_f32 v65, v66, v67
    buffer_store_dwordx2 v[64:65], v6, {sA}, s56 offen
    s_branch L_done""")
    CX, CXB, WOL = 8192, 1152, 81920
    a("L_E:")
    if diag: a("s_mov_b32 s86, 1")
    srd(sA, 14, 4096*1280)
    a(f"""v_lshrrev_b32 v4, 3, v0
    v_and_b32 v5, 2, v4
    v_and_b32 v6, 7, v0
    v_xor_b32 v5, v5, v6
    v_lshlrev_b32 v5, 4, v5
    s_movk_i32 s54, 1280
    v_mad_u32_u24 v4, v4, s54, v5
    v_lshlrev_b32 v7, 9, v2
    v_lshl_add_u32 v7, v1, 4, v7
    s_lshl_b32 s57, s52, 11
    s_add_u32 s57, s57, {H4+LOC}
    s_lshl_b32 s56, {J}, 7
    s_lshl_b32 s55, {W}, 5
    s_add_u32 s55, s55, s56
    v_lshl_add_u32 v13, v1, 1, s55
    ds_read_u16 v14, v13 offset:{XL}
    ds_read_u16 v15, v13 offset:{XL+1280}
    buffer_load_dwordx4 v[72:75], v7, {sWS}, s57 offen sc1
    buffer_load_dwordx4 v[76:79], v7, {sWS}, s57 offen offset:256 sc1
    s_mul_i32 s54, s52, {128*1280}
    s_add_u32 s54, s54, s56
    s_mul_i32 s55, {W}, {16*1088}
    s_add_u32 m0, s55, {WOL}""")
    pw2 = opt.get('pw2', 1)
    if pw2:
        srd(sB, 20, 1728*1280)
        a(f"""s_lshl_b32 s62, {W}, 3
        s_add_u32 s62, s62, {X}
        s_mul_i32 s62, s62, 81920
        s_lshl_b32 s63, {J}, 13
        s_add_u32 s62, s62, s63
        v_lshlrev_b32 v44, {6 if pw2 == 1 else 7}, v0
        buffer_load_dword v80, v44, {sB}, s62 offen {opt.get('pw2f', '')}""")
        if pw2 == 1: a(f"s_add_u32 s62, s62, 4096\nbuffer_load_dword v81, v44, {sB}, s62 offen {opt.get('pw2f', '')}")
    e_pre = opt.get('e_pre', 0)
    for i in range(16):
        if i == e_pre and opt.get('hintE', 1):
            hint_addr('s62', 0, J); hintwait("L_hintE", 's62', 1, 3, 28)
        a(f"buffer_load_dwordx4 v4, {sA}, s54 offen {NT} lds")
        if i < 15: a(f"s_add_u32 m0, m0, 1088\ns_add_u32 s54, s54, {8*1280}")
    idsel(vS, 44)
    a(f"""v_lshrrev_b32 v5, 1, v10
    v_xor_b32 v5, {W}, v5
    v_lshlrev_b32 v5, 5, v5
    v_lshl_add_u32 v5, v10, 7, v5
    v_lshl_add_u32 v5, v9, 3, v5
    s_movk_i32 s54, 1088
    v_mad_u32_u24 v5, v2, s54, v5
    v_add_u32 v5, {WOL}, v5
    v_add_u32 v6, 512, v5            ; rd=1
    v_and_b32 v8, 1, v2
    v_mul_u32_u24 v8, {CXB}, v8
    v_lshrrev_b32 v11, 1, v2
    v_lshl_add_u32 v8, v11, 7, v8
    v_lshl_add_u32 v8, v1, 3, v8
    s_lshl_b32 s55, {W}, 8
    v_add_u32 v8, s55, v8
    v_and_b32 v11, 1, v1
    v_mul_u32_u24 v11, {CXB}, v11
    v_bfe_u32 v12, v1, 1, 1
    v_lshl_add_u32 v11, v12, 6, v11
    v_lshl_add_u32 v11, v2, 4, v11
    v_lshlrev_b32 v12, 2, v1
    s_lshl_b32 s55, {J}, 11
    s_lshl_b32 s56, {X}, 8
    s_add_u32 s55, s55, s56
    s_lshl_b32 s56, {W}, 6
    s_add_u32 s55, s55, s56
    s_add_u32 s55, s55, {H5}
    s_cmp_eq_u32 {X}, 0
    s_cselect_b32 s56, -1, 0""")
    keep(12, '0xffff', '0', 44)
    a(f"""s_waitcnt lgkmcnt(0)
    v_lshlrev_b32 v64, 16, v14
    v_lshlrev_b32 v65, 16, v15
    v_and_b32 v64, s56, v64
    v_and_b32 v65, s56, v65
    v_mov_b32 v66, 0
    v_mov_b32 v67, 0
    s_waitcnt vmcnt(0)
    s_barrier""")
    for k in range(16):
        for rd in range(2): a(f"ds_read_b64_tr_b16 {ar(4*k+2*rd,2)}, v{5+rd} offset:{4352*k}")
    eh = opt.get('ehint', 0)
    if eh: hint_addr('s62', 2, J)
    stamp(6)
    poll("L_pollE", [(72+4*i, 7, 's57', 256*i) for i in range(2)], vN, 44, local='s57')
    stamp(7)
    mfma(vr(68), vr(vS), vr(72), '0'); mfma(vr(68), vr(vS+4), vr(76), vr(68))
    a(f"""v_cvt_pk_bf16_f32 v44, v68, v69
    v_cvt_pk_bf16_f32 v45, v70, v71
    ds_write_b64 v8, v[44:45] offset:{CX}
    s_waitcnt lgkmcnt(0)
    s_barrier""")
    for k in range(8): a(f"ds_read_b128 {vr(80+4*k)}, v11 offset:{CX+128*k}")
    for k in range(8):
        a(f"s_waitcnt lgkmcnt({7-k})")
        mfma(vr(64), vr(80+4*k), ar(8*k), vr(64))
        mfma(vr(68), vr(80+4*k), ar(8*k+4), vr(68) if k else '0')
        if eh == k+1: a(f"buffer_store_dword v55, v54, {sWS}, s62 offen")
    a("v_add_f32 v64, v64, v70\nv_add_f32 v65, v65, v71")
    pack(64, 64, 65, vTn)
    a(f"buffer_store_dword v64, v12, {sWS}, s55 offen sc1")
    stamp(8)
    a("s_branch L_done")
    W1L, W2L = 0, 81920
    HX, HXB, H1X, H1B, ZER, STL = 0, 1408, 4096, 192, 4608, 5120
    a("L_FG:")
    if diag: a("s_mov_b32 s86, 2")
    srd(sA, 18, 640*3456); srd(sB, 20, 1728*1280)
    a(f"""v_lshrrev_b32 v4, 3, v0
    v_and_b32 v5, 2, v4
    v_and_b32 v6, 7, v0
    v_xor_b32 v5, v5, v6
    v_lshlrev_b32 v5, 4, v5
    s_movk_i32 s54, 3456
    v_mad_u32_u24 v4, v4, s54, v5
    v_lshlrev_b32 v5, 1, v2
    v_xor_b32 v5, v5, v1
    v_lshlrev_b32 v5, 4, v5
    s_movk_i32 s54, 1280
    v_mad_u32_u24 v5, v2, s54, v5
    s_mul_i32 s54, s61, {64*1280}
    s_mul_i32 s55, {W}, {16*1280}
    s_add_u32 s54, s54, s55
    s_lshl_b32 s55, {W}, 12
    s_add_u32 s55, s55, {W2L}""")
    if opt.get('hintF', 0):
        hint_addr('s62', 0, J); hintwait("L_hintF", 's62', 1, 3, 28)
    a(f"""s_mul_i32 s56, {W}, {8*3456}
    s_lshl_b32 s57, s61, 7
    s_add_u32 s56, s56, s57
    s_lshl_b32 m0, {W}, 10""")
    for i in range(20):
        a(f"buffer_load_dwordx4 v4, {sA}, s56 offen {NT} lds")
        if i < 19: a(f"s_add_u32 m0, m0, 4096\ns_add_u32 s56, s56, {32*3456}")
    for q in range(4):
        for cb in range(5):
            a(f"s_add_u32 m0, s55, {cb*16384+q*1024-cb*256}")
            a(f"buffer_load_dwordx4 v5, {sB}, s54 offen offset:{cb*256} {NT} lds")
        if q < 3: a(f"s_add_u32 s54, s54, {4*1280}")
        if q == 1:
            a(f"""v_lshrrev_b32 v31, 1, v10
            v_xor_b32 v31, {W}, v31
            v_lshlrev_b32 v31, 5, v31
            v_lshl_add_u32 v31, v10, 7, v31
            v_lshl_add_u32 v31, v9, 3, v31
            v_lshl_add_u32 v31, v2, 10, v31
            v_add_u32 v6, 40960, v31
            s_waitcnt vmcnt(10)
            s_barrier""")
            for k in range(20):
                for rd in range(2): a(f"ds_read_b64_tr_b16 {ar(4*k+2*rd,2)}, v{(31, 6)[k//10]} offset:{4096*(k%10)+512*rd}")
    a(f"""v_lshlrev_b32 v7, 8, v10
    v_lshl_add_u32 v7, v2, 11, v7
    v_lshl_add_u32 v7, v9, 3, v7
    v_add_u32 v7, {W2L}, v7
    s_mul_i32 s54, {W}, 10""")
    for i in range(10):
        a(f"""s_add_u32 s55, s54, {i}
        s_and_b32 s56, s55, 7
        s_lshr_b32 s55, s55, 3
        s_lshl_b32 s55, s55, 14
        v_xor_b32 v{20+i}, s56, v10
        v_lshl_add_u32 v{20+i}, v{20+i}, 5, v7
        v_add_u32 v{20+i}, s55, v{20+i}""")
    idsel(vS, 44)
    a(f"""    s_lshl_b32 s54, {W}, 11
    s_add_u32 s54, s54, {H5}
    s_add_u32 s55, s54, 8192
    s_add_u32 s56, s54, 16384
    v_and_b32 v8, 1, v2
    v_mul_u32_u24 v8, {HXB}, v8
    v_lshl_add_u32 v8, v1, 3, v8
    s_lshl_b32 s57, {W}, 7
    v_add_u32 v8, s57, v8
    v_lshrrev_b32 v11, 1, v2
    v_lshl_add_u32 v7, v11, 9, v8
    s_cmp_lt_u32 {W}, 2
    s_cselect_b32 vcc_lo, -1, 0
    s_mov_b32 vcc_hi, 0
    v_mov_b32 v44, 7168
    v_cndmask_b32 v8, v44, v8, vcc
    v_lshrrev_b32 v11, 3, v1
    v_xor_b32 v11, v11, v1
    v_and_b32 v11, 1, v11
    v_mul_u32_u24 v11, {HXB}, v11
    v_bfe_u32 v12, v1, 1, 1
    v_lshl_add_u32 v11, v12, 6, v11
    v_lshl_add_u32 v11, v2, 4, v11
    v_lshrrev_b32 v12, 5, v0
    v_mul_u32_u24 v13, {H1B}, v12
    v_lshlrev_b32 v12, 5, v0
    v_and_b32 v14, 1, v2
    v_lshlrev_b32 v14, 10, v14
    v_lshrrev_b32 v15, 1, v2
    v_lshl_add_u32 v14, v15, 7, v14
    v_lshl_add_u32 v14, v1, 3, v14
    s_lshl_b32 s57, {W}, 8
    v_add_u32 v30, s57, v14
    v_lshl_add_u32 v13, v1, 1, v13
    s_lshl_b32 s57, {W}, 5
    v_add_u32 v13, s57, v13
    v_and_b32 v14, 1, v1
    v_mul_u32_u24 v14, {H1B}, v14
    v_lshl_add_u32 v14, v2, 4, v14
    v_add_u32 v14, {H1X}, v14
    v_mov_b32 v15, {ZER}""")
    for gm in range(4):
        a(f"s_mov_b32 vcc_lo, {hex((3 << (4*gm)) * 0x10001)}\ns_mov_b32 vcc_hi, vcc_lo\nv_cndmask_b32 v{16+gm}, v15, v14, vcc")
    a(f"""v_lshrrev_b32 v14, 1, v2
    v_lshlrev_b32 v14, 12, v14
    v_and_b32 v15, 31, v0
    v_lshl_add_u32 v14, v15, 2, v14
    v_mov_b32 v15, v14
    s_mul_i32 s57, {W}, {5*4096}
    s_lshl_b32 s58, s61, 7
    s_add_u32 s57, s57, s58
    s_add_u32 s57, s57, {H6}
    s_add_u32 s58, s57, 8192
    s_add_u32 s59, s57, 16384""")
    keep(15, '-1', '0', 44)
    a(f"""v_mov_b32 v32, 0x3f803f80
    v_mov_b32 v33, v32
    v_mov_b32 v34, v32
    v_mov_b32 v35, v32
    v_lshlrev_b32 v45, 2, v0""")
    for j in range(8): a(f"v_mov_b32 v{88+j}, 0")
    a("s_waitcnt lgkmcnt(0)")
    for k in range(20): mfma(vr(36), vr(32), ar(4*k), vr(36) if k else '0')
    a("s_waitcnt vmcnt(0)\ns_barrier")
    a(f"ds_write_b32 v45, v88 offset:{ZER}")
    for i in range(10):
        for k in range(2):
            for rd in range(2): a(f"ds_read_b64_tr_b16 {ar(80+8*i+4*k+2*rd,2)}, v{20+i} offset:{8192*k+1024*rd}")
    stamp(6)
    a(f"v_mov_b32 v45, {MSK}")
    fh = opt.get('fhint', 0)
    if eh:
        hint_addr('s62', 2); hintwait("L_hintF2", 's62', '0x3ff', 47, 43, polls=256)
    if fh:
        a(f"s_lshr_b32 s63, s61, 3"); hint_addr('s62', 3, 's63')
    poll("L_pollF", [(72+4*i, 3, f's{54+i//2}', 1024*(i%2)) for i in (4, 5, 0, 1, 2, 3)], vN, 44, optn=2, optc=f"s_cmp_ge_u32 {W}, 2")
    stamp(7); cstamp(0, 'F')
    mfma(vr(68), vr(vS), vr(88), '0'); mfma(vr(68), vr(vS), vr(92), vr(68))
    mfma(vr(64), vr(vS), vr(72), '0'); mfma(vr(64), vr(vS), vr(76), vr(64))
    mfma(vr(64), vr(vS+4), vr(80), vr(64)); mfma(vr(64), vr(vS+4), vr(84), vr(64))
    a(f"""v_cvt_pk_bf16_f32 v46, v68, v69
    v_cvt_pk_bf16_f32 v47, v70, v71
    ds_write_b64 v8, v[46:47] offset:{HX+1024}
    v_pk_add_f32 v[40:41], v[68:69], v[70:71]
    v_cvt_pk_bf16_f32 v44, v64, v65
    v_cvt_pk_bf16_f32 v45, v66, v67
    ds_write_b64 v7, v[44:45] offset:{HX}
    v_pk_mul_f32 v[42:43], v[68:69], v[68:69]
    v_pk_add_f32 v[40:41], v[40:41], v[64:65]
    v_pk_fma_f32 v[42:43], v[70:71], v[70:71], v[42:43]
    v_pk_add_f32 v[40:41], v[40:41], v[66:67]
    v_pk_fma_f32 v[42:43], v[64:65], v[64:65], v[42:43]
    v_add_f32 v40, v40, v41
    v_pk_fma_f32 v[42:43], v[66:67], v[66:67], v[42:43]
    v_add_f32 v41, v42, v43
    ds_write_b64 v30, v[40:41] offset:{STL}
    s_waitcnt lgkmcnt(0)
    s_barrier""")
    cstamp(1, 'F')
    a(f"ds_read_b128 {vr(72)}, v11 offset:{HX}\nds_read_b128 {vr(76)}, v11 offset:{HX+128}")
    for i in range(2): a(f"ds_read_b128 {vr(20+4*i)}, v12 offset:{STL+16*i}")
    for k in range(2, 10): a(f"ds_read_b128 {vr(72+4*k)}, v11 offset:{HX+128*k}")
    dm = ("quad_perm:[1,0,3,2]", "quad_perm:[2,3,0,1]", "row_half_mirror", "row_mirror")
    fill = {4: "v_add_f32 v20, v20, v22\nv_add_f32 v21, v21, v23", 5: "v_add_f32 v24, v24, v26\nv_add_f32 v25, v25, v27",
            6: "v_add_f32 v40, v20, v24\nv_add_f32 v42, v21, v25"}
    for i in range(4): fill[7+i] = f"v_add_f32_dpp v40, v40, v40 {dm[i]} row_mask:0xf bank_mask:0xf\nv_add_f32_dpp v42, v42, v42 {dm[i]} row_mask:0xf bank_mask:0xf"
    fill[11] = "v_mov_b32 v41, v40\nv_mov_b32 v43, v42"
    fill[12] = "v_permlane16_swap_b32 v40, v41"
    fill[13] = "v_permlane16_swap_b32 v42, v43"
    fill[14] = "v_add_f32 v40, v40, v41\nv_add_f32 v42, v42, v43"
    fill[15] = f"v_mul_f32 v40, {hex(f2u(1/640))}, v40\nv_mul_f32 v42, {hex(f2u(1/640))}, v42"
    fill[16] = "v_fma_f32 v42, -v40, v40, v42\nv_max_f32 v42, 0, v42"
    fill[17] = f"v_add_f32 v42, {hex(f2u(1e-5))}, v42\nv_mul_f32 v40, v40, v36"
    fill[18] = "v_rsq_f32 v42, v42"
    for k in range(10):
        a(f"s_waitcnt lgkmcnt({11-k if k < 2 else 9-k})")
        mfma(vr(64), vr(72+4*k), ar(8*k), vr(64) if k else '0')
        if 2*k in fill: a(fill[2*k])
        mfma(vr(68), vr(72+4*k), ar(8*k+4), vr(68) if k else '0')
        if 2*k+1 in fill: a(fill[2*k+1])
    cstamp(2, 'F')
    a(f"""v_mul_f32 v43, {hex(f2u(-math.log2(math.e)))}, v42
    v_sub_f32 v64, v64, v40
    v_add_f32 v64, v64, v70
    v_mul_f32 v65, v64, v43
    v_exp_f32 v65, v65
    v_mul_f32 v64, v64, v42          ; z
    v_add_f32 v65, 1.0, v65
    v_rcp_f32 v65, v65
    v_mul_f32 v64, v64, v65
    v_cvt_pk_bf16_f32 v64, v64, v64
    ds_write_b16 v13, v64 offset:{H1X}
    s_waitcnt lgkmcnt(0)
    s_barrier""")
    cstamp(3, 'F')
    for gm in range(4):
        for k in range(2): a(f"ds_read_b128 {vr(72+8*gm+4*k)}, v{16+gm} offset:{64*k}")
    accs = [64, 68, 104]
    order = [8, 9, 0, 1, 2, 3, 4, 5, 6, 7]
    seen = set(); nread = 0
    for pos, i in enumerate(order):
        for k in range(2):
            need = 2*(i%4)+k+1
            if need > nread: a(f"s_waitcnt lgkmcnt({8-need})"); nread = need
            acc = accs[i//4]
            mfma(vr(acc), vr(72+8*(i%4)+4*k), ar(80+8*i+4*k), vr(acc) if acc in seen else '0'); seen.add(acc)
        if fh == pos+1: a(f"buffer_store_dword v55, v54, {sWS}, s62 offen")
        if pos == 5:
            pack(104, 104, 105, vTn); a(f"buffer_store_dword v104, v15, {sWS}, s59 offen sc1")
        if pos == 9:
            pack(64, 64, 65, vTn); a(f"buffer_store_dword v64, v14, {sWS}, s57 offen sc1")
    pack(68, 68, 69, vTn); a(f"buffer_store_dword v68, v14, {sWS}, s58 offen sc1")
    stamp(8); cstamp(4, 'F')
    a(f"""s_or_b32 s61, s61, {W}
    s_cbranch_scc1 L_done
    s_mov_b64 exec, 1
    v_mov_b32 v4, {T}
    buffer_store_dword v4, v3, {sWS}, 0 offen sc1
    s_branch L_done""")
    RS = 1056
    QL, PL, ML, CC, LL = 135168, 151552, 155648, 155904, 158720
    x2 = opt.get('x2', 1)
    a("L_Y:")
    if diag: a("s_mov_b32 s86, 4")
    a(f"""s_add_u32 s51, s51, s52          ; s51 = h = 4x + (j>>2)
    s_lshr_b32 s54, {J}, 1
    s_lshl_b32 s54, s54, 3
    s_add_u32 s54, s54, {X}          ; chunk = 32b+s
    s_and_b32 s55, {J}, 1            ; hg
    s_lshl_b32 s56, s54, 17
    s_lshl_b32 s57, {W}, 15
    s_add_u32 s56, s56, s57
    s_mul_i32 s57, {W}, {32*RS}
    s_mov_b32 m0, s57
    s_mov_b32 s34, {2*4096*1024}
    s_mov_b32 s38, {512*8192}
    s_waitcnt lgkmcnt(0)
    s_mov_b64 s[32:33], s[6:7]
    s_load_dword {T}, s[26:27], 0""")
    ythr = opt.get('ythr', 0)
    main_l = a.l; a.l = []
    for _once in range(1):
        if True:
            a(f"""s_mov_b64 s[28:29], s[26:27]
            s_mov_b64 s[36:37], s[12:13]
            s_waitcnt lgkmcnt(0)
            s_not_b32 {T}, {T}
            v_and_b32 v4, 2, v2
            v_xor_b32 v4, v4, v9""")
            tags4(48, 9, 44); tags4(56, 4, 44); ntags(56, 56); ntags(60, 48)
            if x2:
                a(f"v_and_b32 v44, 7, v0\nv_lshlrev_b32 v44, 1, v44\nv_lshrrev_b32_e64 v48, v44, {T}\nv_lshrrev_b32 v49, 1, v48\nv_mov_b32 v50, v48\nv_mov_b32 v51, v49")
            a(f"""v_lshrrev_b32_e64 v52, v1, {T}
            v_and_b32 v5, 60, v0
            v_add_u32 v4, v4, v5
            v_lshlrev_b32 v4, 4, v4
            s_lshr_b32 s58, s54, 5
            s_lshl_b32 s58, s58, 15
            s_lshl_b32 s59, s55, 10
            s_add_u32 s58, s58, s59
            s_lshl_b32 s59, {W}, 13
            s_add_u32 s58, s58, s59
            s_add_u32 s58, s58, {H2}
            s_add_u32 s59, s58, 4096
            s_lshl_b32 s60, {W}, 12
            s_add_u32 s60, s60, {QL}
            v_add_u32 v5, s60, v3
            v_lshrrev_b32 v6, 2, v1
            v_and_b32 v6, 2, v6
            v_xor_b32 v6, v6, v2
            v_lshlrev_b32 v6, 4, v6
            v_lshl_add_u32 v6, v1, 6, v6
            v_add_u32 v6, {QL}, v6
            v_mul_u32_u24 v7, {RS}, v1
            v_lshl_add_u32 v7, v2, 4, v7
            v_add_u32 v7, s57, v7
            v_lshrrev_b32 v8, 2, v0
            v_mul_u32_u24 v8, {RS}, v8
            v_lshl_add_u32 v8, v9, 3, v8
            s_lshl_b32 s60, {W}, 8
            v_add_u32 v8, s60, v8
            v_add_u32 v11, {64*RS}, v8
            s_lshl_b32 s60, {W}, 2
            s_lshl_b32 s49, 15, s60
            s_add_u32 s60, s60, {LL}
            v_add_u32 v12, s60, v3
            v_lshlrev_b32 v13, 2, v1
            v_add_u32 v13, {ML}, v13         ; m addr
            v_mov_b32 v33, {T}
            v_mov_b32 v35, {T}
            v_add_u32 v15, {PL}, v3
            s_lshl_b32 s60, {W}, 10
            v_add_u32 v14, s60, v15
            v_lshlrev_b32 v16, 18, v2
            v_lshl_add_u32 v16, v1, {3 if x2 else 4}, v16
            s_lshl_b32 s60, s55, 20
            s_lshl_b32 s61, {W}, 14
            s_add_u32 s60, s60, s61
            s_lshl_b32 s61, s54, 8
            s_add_u32 s60, s60, s61
            s_add_u32 s4, s60, {H3}
            s_add_u32 s5, s4, 0x10000
            s_add_u32 s6, s4, 0x20000
            s_add_u32 s7, s4, 0x30000
            v_lshlrev_b32 v17, 10, v1""")
            keep(17, 's49', '0', 44)
            a(f"""s_lshl_b32 s61, s55, 14
            s_lshl_b32 s62, s54, 4
            s_add_u32 s61, s61, s62
            s_add_u32 s61, s61, {H3S}
            v_lshlrev_b32 v18, 13, v2
            v_lshl_add_u32 v18, v1, 4, v18
            s_lshl_b32 s62, s53, 20
            s_lshl_b32 s63, {W}, 18
            s_add_u32 s62, s62, s63
            s_lshl_b32 s63, s51, 8
            s_add_u32 s62, s62, s63
            v_lshlrev_b32 v53, 2, v1""")
            hint_addr('s8', 0, J); hint_addr('s16', 1); hint_lane(19, 44)
            a(f"""v_mul_u32_u24 v44, 2432, v2
            s_mul_i32 s54, {W}, 576
            v_lshl_add_u32 v40, v1, 4, v44
            v_add_u32 v40, s54, v40
            s_lshl_b32 s54, {W}, 6
            v_mul_u32_u24 v41, 288, v10""")
            if x2: a("v_lshlrev_b32 v44, 1, v44")
            a(f"""v_add3_u32 v41, v41, v44, s54
            v_lshl_add_u32 v41, v9, 3, v41
            s_lshl_b32 s9, s51, 10
            s_add_u32 s9, s9, {H3S}
            s_lshl_b32 s55, s51, 2
            s_add_u32 s55, s55, s53
            s_lshl_b32 s10, s55, 14
            s_lshl_b32 s11, {W}, 11
            s_add_u32 s10, s10, s11
            s_add_u32 s10, s10, {H3}
            s_add_u32 s11, s10, 8192
            s_lshl_b32 s14, s55, 9
            s_lshl_b32 s15, {W}, 7
            s_add_u32 s14, s14, s15
            s_add_u32 s14, s14, {H4}
            s_add_u32 s15, s14, {LOC}
            v_lshlrev_b32 v42, 2, v0
            v_lshrrev_b32 v43, 3, v1
            v_lshl_add_u32 v43, v43, 5, v2
            s_lshl_b32 s54, {W}, 3
            v_add_lshl_u32 v43, v43, s54, 2
            v_lshrrev_b32 v46, 1, v2
            v_mul_u32_u24 v46, 288, v46
            v_lshl_add_u32 v46, v1, 4, v46
            v_and_b32 v47, 1, v2
            v_lshl_add_u32 v46, v47, 3, v46
            s_mul_i32 s54, {W}, 576
            s_add_u32 s54, s54, {CC}
            v_add_u32 v46, s54, v46
            v_and_b32 v47, 7, v1
            v_mul_u32_u24 v47, 288, v47
            v_lshl_add_u32 v47, v2, 4, v47
            v_add_u32 v47, {CC}, v47
            v_and_b32 v44, 1, v1
            v_lshlrev_b32 v44, 4, v44
            v_mov_b32 v45, 0xffff
            v_lshlrev_b32 v45, v44, v45""")
            for i2 in range(8):
                a(f"s_mov_b32 vcc_lo, {hex((3 << (2*i2)) * 0x10001)}\ns_mov_b32 vcc_hi, vcc_lo\nv_cndmask_b32 v{224+i2}, 0, v45, vcc")
            keep(42, '-1', '0', 44)
    setup = a.l; a.l = main_l
    s0 = ythr - 1 if ythr else 11
    per = -(-len(setup) // (opt.get('setup_end', 28) - s0))
    for i in range(32):
        a(f"buffer_load_dwordx4 v3, {sA}, s56 offen offset:{1024*(i%4)} {NT} lds")
        if i >= s0 and setup:
            take = per
            while take < len(setup) and setup[take-1].startswith('s_cmp'): take += 1
            a.l += setup[:take]; setup = setup[take:]
        if i < 31:
            if i % 4 < 3: a("s_add_u32 m0, m0, 32")
            else: a(f"s_add_u32 m0, m0, {4*RS-96}\ns_add_u32 s56, s56, 4096")
        if ythr and ythr-1 <= i < opt.get('ythr_end', 10): a(f"s_waitcnt vmcnt({ythr-1})")
    assert not setup
    stamp(1)
    def kreads(kt):
        for s in range(16): a(f"ds_read_b128 {ar(64*kt+4*s)}, v7 offset:{kt*16*RS+64*s}")
    def vreads(rd):
        for wp in range(4):
            for t in range(8):
                a(f"ds_read_b64_tr_b16 {ar(128+16*t+4*wp+2*rd,2)}, v{8 if wp < 2 else 11} offset:{(32*(wp&1)+16*rd)*RS+32*t}")
    WU = 192
    def wuvload(r): a(f"buffer_load_dwordx4 {vr(WU+4*r)}, v18, {sB}, s62 offen {NT}\ns_add_u32 s62, s62, {4*8192}")
    wm = opt.get('wuv', 'qk')
    nstream = {'stream': 8, 'half': 4}.get(wm, 0)
    LQ = [(64+4*i, 4, f's{58+i//2}', 2048*(i%2)) for i in range(4)]
    a(f"v_mov_b32 v44, 0xff800000\nds_write_b32 v13, v44")
    a("s_waitcnt vmcnt(16)\ns_barrier")
    kreads(0); vreads(0)
    for r in range(nstream): wuvload(r)
    if qh and not nstream:
        a(f"s_waitcnt vmcnt({opt.get('qh_early', 4)})"); hint_ld('s16', 53, 54); a("s_waitcnt vmcnt(1)")
    else: a(f"s_waitcnt vmcnt({nstream})")
    qpos = opt.get('qpos', 1)
    def qfirst():
        if qh: hintwait("L_qh", 's16', '0xffff', 53, 54, issued=True)
        for L in LQ: ld(L)
    if not nstream and qpos == 0: qfirst()
    a("s_barrier")
    stamp(2)
    kreads(1)
    if not nstream and qpos == 1: qfirst()
    vreads(1)
    if not nstream and qpos == 2: qfirst()
    if nstream:
        a(f"s_waitcnt vmcnt({opt.get('q_early', nstream//2)})")
        for L in LQ: ld(L)
    poll("L_pollC", LQ, 56, 44, issued=True, each=lambda i: a(f"ds_write_b128 v5, {vr(64+4*i)} offset:{1024*i}"))
    a("s_waitcnt lgkmcnt(0)")
    if diag: a(f"s_mov_b32 s87, {CNT}")
    stamp(3)
    a("s_barrier")
    cstamp(0)
    Q0 = 128
    hint_at = opt.get('hint_at', 2)
    def hint(): a(f"buffer_store_dword v33, v19, {sWS}, s8 offen")
    PRE = 6
    for s in range(PRE): a(f"ds_read_b128 {vr(Q0+4*s)}, v6 offset:{1024*s}")
    nr = nstream
    for s in range(16):
        a(f"s_waitcnt lgkmcnt({min(PRE-1, 15-s)})")
        mfma(vr(20), ar(4*s), vr(Q0+4*s), vr(20) if s else '0')
        if s + PRE < 16: a(f"ds_read_b128 {vr(Q0+4*(s+PRE))}, v6 offset:{1024*(s+PRE)}")
        mfma(vr(24), ar(64+4*s), vr(Q0+4*s), vr(24) if s else '0')
        if s == hint_at: hint()
        if wm in ('qk', 'half') and s % 2 == 1 and nr < 8: wuvload(nr); nr += 1
    cstamp(1)
    a("""v_max3_f32 v28, v20, v21, v22
    v_max3_f32 v29, v24, v25, v26
    v_max3_f32 v28, v28, v23, v27
    v_max_f32 v28, v28, v29
    ds_max_f32 v13, v28
    s_waitcnt lgkmcnt(0)
    s_barrier
    ds_read_b32 v32, v13""")
    if hint_at == 16: hint()
    a("s_waitcnt lgkmcnt(0)")
    cstamp(2)
    for i in range(4):
        a(f"v_pk_add_f32 {vr(20+2*i,2)}, {vr(20+2*i,2)}, v[32:33] op_sel_hi:[1,0] neg_lo:[0,1] neg_hi:[0,1]")
    for i in range(8): a(f"v_exp_f32 v{20+i}, v{20+i}")
    for j in range(4): a(f"v_cvt_pk_bf16_f32 v{28+j}, v{20+2*j}, v{21+2*j}")
    a(f"""ds_write_b128 v14, v[28:31]
    v_pk_add_f32 v[20:21], v[20:21], v[22:23]
    v_pk_add_f32 v[24:25], v[24:25], v[26:27]
    v_pk_add_f32 v[20:21], v[20:21], v[24:25]
    v_add_f32 v20, v20, v21
    ds_write_b32 v12, v20
    s_waitcnt lgkmcnt(0)
    s_barrier""")
    cstamp(3)
    for wp in range(4): a(f"ds_read_b128 {vr(64+4*wp)}, v15 offset:{1024*wp}")
    a(f"ds_read_b128 v[36:39], v15 offset:{LL-PL}")
    if hint_at == 17: hint()
    O0, OP = 80, 112
    fill = {}
    def addf(k, s): fill.setdefault(k, []).append(s)
    addf(6, "s_waitcnt lgkmcnt(0)\nv_add_f32 v36, v36, v37"); addf(7, "v_add_f32 v38, v38, v39")
    addf(8, "v_add_f32 v34, v36, v38\nv_add_f32 v36, v36, v38"); addf(10, "v_permlane32_swap_b32 v34, v36")
    addf(11, "v_add_f32 v34, v34, v36\nv_mov_b32 v36, v34")
    addf(16, "v_permlane16_swap_b32 v34, v36"); addf(17, "v_add_f32 v34, v34, v36")
    addf(18, f"buffer_store_dwordx4 v[32:35], v17, {sWS}, s61 offen sc1")
    def pk(u, r): return f"v_perm_b32 v{OP+4*r+u}, v{O0+8*u+4+r}, v{O0+8*u+r}, {PRM}\nv_bfi_b32 v{OP+4*r+u}, {MSK}, v{48+u}, v{OP+4*r+u}"
    for u in range(3):
        for r in range(4): addf(8*u+12+r, pk(u, r))
    if x2:
        for r in range(4): addf(24+r, f"buffer_store_dwordx2 {vr(OP+4*r,2)}, v16, {sWS}, s{4+r} offen sc1")
    k = 0
    for u in range(4):
        for wp in range(4):
            if u == 0: a(f"s_waitcnt lgkmcnt({4-wp})")
            for tt in range(2):
                mfma(vr(O0+8*u+4*tt), vr(64+4*wp), ar(128+32*u+16*tt+4*wp), vr(O0+8*u+4*tt) if wp else '0')
                for s_ in fill.get(k, []): a(s_)
                k += 1
    cstamp(4)
    for r in range(4):
        a(pk(3, r))
        if x2: a(f"buffer_store_dwordx2 {vr(OP+4*r+2,2)}, v16, {sWS}, s{4+r} offen offset:128 sc1")
        else: a(f"buffer_store_dwordx4 {vr(OP+4*r)}, v16, {sWS}, s{4+r} offen sc1")
    if hint_at == 18: hint()
    stamp(4); cstamp(5)
    nst = (8 if x2 else 4) + 1 + (1 if hint_at >= 16 else 0)
    LO = [(64+4*i, 3, f's{10+i//2}', 1024*(i%2)) for i in range(4)]
    def shuffle():
        for r in range(8): a(f"ds_write_b128 v40, {vr(WU+4*r)} offset:{4*(r&3)*2432+(r>>2)*288}")
        a("s_waitcnt lgkmcnt(0)\ns_barrier")
        for t in range(2):
            for k in range(4):
                for rd in range(2):
                    off = ((k>>1)*1152 + (8*(k&1)+rd)*2432 if x2 else k*9728 + rd*1152) + t*32
                    a(f"ds_read_b64_tr_b16 {ar(16*t+4*k+2*rd,2)}, v41 offset:{off}")
    def statld(): a(f"buffer_load_dwordx4 v[28:31], v3, {sWS}, s9 offen sc1")
    if wm == 'after':
        for r in range(8): wuvload(r)
        a(f"s_waitcnt vmcnt({opt.get('d_wait', 4)})")
        statld()
        for L in LO: ld(L)
        a("s_waitcnt vmcnt(5)")
        stamp(8)
        shuffle()
    else:
        a(f"s_waitcnt vmcnt({nst})")
        shuffle()
        statld()
        a(f"s_waitcnt vmcnt({1+opt.get('d_wait', 0)})")
        stamp(8)
        for L in LO: ld(L)
    a(f"""s_mov_b32 {CNT}, 0
    s_waitcnt vmcnt(4)
    s_branch L_pollS2
    L_pollS:
    s_add_u32 {CNT}, {CNT}, 1
    s_cmp_gt_u32 {CNT}, {POLL_MAX}
    s_cbranch_scc1 L_fail""")
    statld()
    for L in LO: ld(L)
    a(f"""s_waitcnt vmcnt(4)
    L_pollS2:
    v_bitop3_b32 v44, v29, v31, {T} bitop3:0x7e
    v_cmp_ne_u32 vcc, 0, v44
    v_mov_b32 v32, v28
    s_cbranch_vccnz L_pollS""")
    stamp(5)
    red32("v_max_f32", 32, 33)
    a("v_sub_f32 v28, v28, v32\nv_exp_f32 v28, v28\nv_mul_f32 v30, v28, v30")
    red32("v_add_f32", 30, 33)
    a("""v_rcp_f32 v30, v30
    v_mul_f32 v28, v28, v30
    v_cvt_pk_bf16_f32 v28, v28, v28
    ds_bpermute_b32 v32, v43, v28
    ds_bpermute_b32 v33, v43, v28 offset:16""")
    a("s_waitcnt lgkmcnt(0)")
    for i in range(4):
        for j in range(4): a(f"v_and_b32 v{80+4*i+j}, v{32+(i&1)}, v{224+4*(i>>1)+j}")
    poll("L_pollD", LO, 60, 44, issued=True)
    stamp(6)
    for i in range(4): mfma(vr(96), vr(80+4*i), vr(64+4*i), vr(96) if i else '0')
    a("""v_cvt_pk_bf16_f32 v96, v96, v97
    v_cvt_pk_bf16_f32 v97, v98, v99
    ds_write_b64 v46, v[96:97]
    s_waitcnt lgkmcnt(0)
    s_barrier""")
    for k in range(4): a(f"ds_read_b128 {vr(64+4*k)}, v47 offset:{64*k}")
    for k in range(4):
        a(f"s_waitcnt lgkmcnt({3-k})")
        for t in range(2): mfma(vr(96+4*t), vr(64+4*k), ar(16*t+4*k), vr(96+4*t) if k else '0')
    a(f"""v_pk_add_f32 v[96:97], v[96:97], v[98:99]
    v_pk_add_f32 v[100:101], v[100:101], v[102:103]
    v_permlane16_swap_b32 v96, v100
    v_permlane16_swap_b32 v97, v101
    v_pk_add_f32 v[96:97], v[96:97], v[100:101]""")
    pack(96, 96, 97, 52)
    a(f"""buffer_store_dword v96, v42, {sWS}, s15 offen
    buffer_store_dword v96, v42, {sWS}, s14 offen sc1""")
    stamp(7)
    a("L_done:")
    if probe is not None:
        role, k = probe
        a("s_waitcnt vmcnt(0)\ns_memrealtime s[82:83]\ns_waitcnt lgkmcnt(0)")
        a(f"s_cmp_lg_u32 s86, {dict(X=0,E=1,FG=2,R=3,Y=4)[role]}" if role not in (None,'X') else ("s_cmp_eq_u32 s86, 4" if role == 'X' else "s_cmp_lg_u32 s86, s86"))
        a("s_cbranch_scc1 L_end")
        a(f"s_sub_u32 s54, s{64+2*k}, s64\ns_lshl_b32 s54, s54, 2\ns_add_u32 s54, s54, 4000\ns_min_u32 s54, s54, 30000")
        a("L_spin:\ns_memrealtime s[88:89]\ns_waitcnt lgkmcnt(0)\ns_sub_u32 s55, s88, s64\ns_cmp_lt_u32 s55, s54\ns_cbranch_scc1 L_spin")
    elif diag:
        a(f"""s_waitcnt vmcnt(0)
        s_memrealtime s[82:83]
        s_waitcnt lgkmcnt(0)
        s_mov_b64 exec, 1
        s_lshl_b32 s54, s2, 8
        s_lshl_b32 s55, {W}, 6
        s_add_u32 s54, s54, s55
        s_add_u32 s54, s54, {DIAG}""")
        for k in range(11): a(f"v_mov_b32 v{4+k}, s{64+2*k}")
        a(f"v_mov_b32 v15, s87")
        for k in range(3): a(f"buffer_store_dwordx4 {vr(4+4*k)}, v3, {sWS}, s54 offen offset:{16*k}")
    a("L_fail:\nL_end:\ns_endpgm")
    body = a.finish().replace('CODE_LAST', str(opt.get('code_last', 15360)))
    ref = open(f"cdna_kernels/{NAME}.s.ref").read().split('\n')
    hdr = [l for l in ref if l.startswith(';') and '@launch' not in l]
    s = '\n'.join(hdr) + f"\n; @launch grid=(256,1,1) block=(256,1,1) lds={LDS_BYTES}\n"
    s += f""".amdgcn_target "amdgcn-amd-amdhsa--gfx950"
.text
.globl {NAME}_kernel
.p2align 8
.type {NAME}_kernel,@function
{NAME}_kernel:
{body}.section .rodata,"a"
.p2align 6
.amdhsa_kernel {NAME}_kernel
  .amdhsa_next_free_vgpr 512
  .amdhsa_next_free_sgpr 102
  .amdhsa_accum_offset 256
  .amdhsa_group_segment_fixed_size 0
  .amdhsa_kernarg_size 96
  .amdhsa_user_sgpr_count 2
  .amdhsa_user_sgpr_kernarg_segment_ptr 1
  .amdhsa_system_sgpr_workgroup_id_x 1
.end_amdhsa_kernel
"""
    return s
def parse_opts(args):
    opt = {}
    for kv in args:
        k, v = kv.split('=')
        try: v = int(v)
        except ValueError: pass
        opt[k] = v
    return opt
if __name__ == "__main__":
    nm = sys.argv[1] if len(sys.argv) > 1 else "k"
    opt = parse_opts(sys.argv[2:])
    open(f"work/{nm}.s", "w").write(gen(diag=False, opt=opt))
    open(f"work/{nm}_d.s", "w").write(gen(diag=True, opt=opt))
```

```python
import sys; sys.path.insert(0,'work')
import gen
opt = gen.parse_opts(sys.argv[1].split()) if sys.argv[1] != '-' else {}
for i, sp in enumerate(sys.argv[2:]):
    role, k = sp.split(':')
    open(f'p{i}.s','w').write(gen.gen(opt=dict(opt), probe=(None if role=='-' else role, int(k))))
```
